```python
import torch

def _softmax(x, axis=-1):
    return torch.softmax(x, dim=axis)

def _gelu(x):
    return torch.nn.functional.gelu(x, approximate='tanh')

def _silu(x):
    return torch.nn.functional.silu(x)

def _sigmoid(x):
    return torch.sigmoid(x)

def _layernorm(x, axis=-1, eps=1e-05):
    m = x.mean(dim=axis, keepdim=True)
    v = x.var(dim=axis, keepdim=True, unbiased=False)
    return (x - m) / torch.sqrt(v + eps)

def _scatter_add(tgt, idx, src, axis=0):
    return tgt.clone().index_add_(axis, idx, src)

def _segment_sum(src, seg, n):
    out = torch.zeros((n,) + src.shape[1:], dtype=src.dtype)
    return out.index_add_(0, seg, src)

def _pad(x, pw):
    flat = tuple((v for pair in reversed(pw) for v in pair))
    return torch.nn.functional.pad(x, flat)
kernel_name = 'gather_scatter__molecular_angular_painn__graph'

def setup_inputs():

    _w = lambda a: (lambda t: t.to(torch.bfloat16) if t.is_floating_point() else t)(torch.as_tensor(a))
    N, deg, D = (50000, 16, 64)
    n_rbf = max(0, 4)
    E = N * deg
    cutoff = 5.0
    freqs = (torch.arange(1, n_rbf + 1) * torch.pi / cutoff).to(float)
    return {'sv': _w((lambda *s: torch.randn(*s, dtype=torch.bfloat16) * 0.4)(N, 4, D) * 0.3), 'pos': _w((lambda *s: torch.randn(*s, dtype=torch.bfloat16) * 3.2)(N, 3) * 1.2), 'src': _w((lambda lo, hi, *s: torch.randint(lo, hi, s))(0, N, E).to(torch.int64)), 'dst': _w((lambda lo, hi, *s: torch.randint(lo, hi, s))(0, N, E).to(torch.int64)), 'freqs': _w(freqs), 'w_phi1': _w((lambda *s: torch.randn(*s, dtype=torch.bfloat16) * 3.2)(D, D) / D ** 0.5), 'w_phi2': _w((lambda *s: torch.randn(*s, dtype=torch.bfloat16) * 3.2)(D, 3 * D) / D ** 0.5), 'w_rbf': _w((lambda *s: torch.randn(*s, dtype=torch.bfloat16) * 3.2)(n_rbf, 3 * D) / n_rbf ** 0.5)}

def reference(sv, pos, src, dst, freqs, w_phi1, w_phi2, w_rbf):
    N, _, D = sv.shape
    E = src.shape[0]
    PI, cutoff = (3.141592653589793, 5.0)
    s, v = (sv[:, 0, :].clone(), sv[:, 1:, :].clone())
    r_vec = pos[src] - pos[dst]
    d = torch.sqrt((r_vec * r_vec).sum(-1) + 1e-08)
    r_hat = r_vec / d[:, None]
    rbf = torch.sin(d[:, None] * freqs[None, :]) / d[:, None]
    fcut = 0.5 * (torch.cos(PI * d / cutoff) + 1.0)
    fcut = torch.where(d < cutoff, fcut, 0.0 * d)
    Wf = rbf @ w_rbf * fcut[:, None]
    phi = (_silu(s @ w_phi1) @ w_phi2)[src]
    m = phi * Wf
    m_s, m_vv, m_vr = (m[:, :D].clone(), m[:, D:2 * D].clone(), m[:, 2 * D:].clone())
    ds = _segment_sum(m_s, dst, N)
    dv_e = m_vv[:, None, :] * v[src] + m_vr[:, None, :] * r_hat[:, :, None]
    dv = _segment_sum(dv_e.reshape(E, 3 * D), dst, N).reshape(N, 3, D)
    return sv + torch.concatenate([ds[:, None, :], dv], axis=1)
```

```python
import re

def vr(x, n=1):
    return f"v{x}" if n == 1 else f"v[{x}:{x+n-1}]"
def ar(x, n=1):
    return f"a{x}" if n == 1 else f"a[{x}:{x+n-1}]"
def sr(x, n=1):
    return f"s{x}" if n == 1 else f"s[{x}:{x+n-1}]"

_REG = re.compile(r"^(-|\|)?(abs\()?(-)?([vas])(\d+|\[(\d+):(\d+)\])\)?\|?$")

def regs_of(tok):
    tok = tok.strip()
    if tok in ("vcc",): return {("s", 106), ("s", 107)}
    if tok == "vcc_lo": return {("s", 106)}
    if tok == "vcc_hi": return {("s", 107)}
    if tok == "exec": return {("s", 126), ("s", 127)}
    if tok == "exec_lo": return {("s", 126)}
    if tok == "exec_hi": return {("s", 127)}
    if tok == "m0": return {("s", 124)}
    m = _REG.match(tok)
    if not m: return set()
    k = m.group(4)
    if m.group(6) is not None:
        return {(k, i) for i in range(int(m.group(6)), int(m.group(7)) + 1)}
    return {(k, int(m.group(5)))}

VCC = {("s", 106), ("s", 107)}
EXEC = {("s", 126), ("s", 127)}
M0 = {("s", 124)}
TRANS = ("v_exp_", "v_log_", "v_rcp_", "v_rsq_", "v_sqrt_", "v_sin_", "v_cos_")

class I:
    __slots__ = ("text", "mn", "ops", "mods", "w", "r", "kind", "label", "target", "passes", "srcc", "ab", "pre")
    def __init__(self, text):
        self.text = text
        self.label = None; self.target = None; self.passes = 0
        self.srcc = set(); self.ab = set(); self.pre = []
        t = text.split(";")[0].strip()
        self.w = set(); self.r = set()
        if t.endswith(":"):
            self.label = t[:-1]; self.mn = ""; self.kind = "label"; self.ops = []; self.mods = ""; return
        if t == "" or t.startswith("."):
            self.mn = ""; self.kind = "dir"; self.ops = []; self.mods = ""; return
        p = t.split(None, 1)
        mn = self.mn = p[0]
        rest = p[1] if len(p) > 1 else ""
        toks = [x.strip() for x in rest.split(",")] if rest else []
        mods = ""
        if toks:
            last = toks[-1].split(None, 1)
            toks[-1] = last[0]
            mods = last[1] if len(last) > 1 else ""
        ops = []
        for i, x in enumerate(toks):
            ops.append(x)
        if re.search(r"(op_sel|op_sel_hi|neg_lo|neg_hi|quad_perm):\[", rest):
            m = re.search(r"\s(op_sel|op_sel_hi|neg_lo|neg_hi|quad_perm):\[", rest)
            head = rest[:m.start()]; tail = rest[m.start():]
            toks = [x.strip() for x in head.split(",")]
            last = toks[-1].split(None, 1)
            toks[-1] = last[0]
            mods = (last[1] if len(last) > 1 else "") + " " + tail
            ops = toks
        self.ops = ops; self.mods = mods
        R = lambda i: regs_of(ops[i]) if i < len(ops) else set()
        allr = lambda a: set().union(*[R(i) for i in range(a, len(ops))]) if len(ops) > a else set()
        if mn.startswith("v_mfma"):
            self.kind = "mfma"; self.w = R(0); self.ab = R(1) | R(2); self.srcc = R(3); self.r = self.ab | self.srcc
            self.passes = 8 if "32x32" in mn else 4
            if "4x4" in mn: self.passes = 2
            if "16x16x4_4b" in mn: self.passes = 8
        elif mn.startswith("v_"):
            self.kind = "valu"
            if mn.startswith("v_cmpx"):
                self.w = R(0) | EXEC; self.r = allr(1)
            elif mn.startswith("v_cmp"):
                self.w = R(0); self.r = allr(1)
            elif re.match(r"v_(add|sub|subrev)_co_", mn) or mn.startswith("v_mad_u64") or mn.startswith("v_div_scale"):
                self.w = R(0) | R(1); self.r = allr(2)
            elif re.match(r"v_(addc|subb|subbrev)_co_", mn):
                self.w = R(0) | R(1); self.r = allr(2)
            elif mn.startswith("v_permlane") and "swap" in mn:
                self.w = R(0) | R(1); self.r = R(0) | R(1)
            elif mn.startswith("v_swap"):
                self.w = R(0) | R(1); self.r = R(0) | R(1)
            elif mn == "v_nop":
                pass
            else:
                self.w = R(0); self.r = allr(1)
                if re.match(r"v_(fmac|mac|dot2c|dot4c|pk_fmac|writelane)", mn): self.r |= R(0)
                if "dpp" in mn or "row_" in mods or "quad_perm" in mods or "wave_" in mods:
                    self.r |= R(0)
                if "sdwa" in mn and "UNUSED_PRESERVE" in mods: self.r |= R(0)
                if mn.startswith("v_cndmask") and len(ops) == 3: self.r |= VCC
        elif mn.startswith("ds_"):
            self.kind = "ds"
            if mn.startswith("ds_read") or "_rtn_" in mn or "permute" in mn or mn.startswith("ds_swizzle"):
                self.w = R(0); self.r = allr(1)
            else:
                self.r = allr(0)
        elif mn.startswith("buffer_") or mn.startswith("global_"):
            self.kind = "vmem"
            m_all = " " + mods + " "
            if mn.startswith("buffer_load") and " lds " in m_all:
                self.r = allr(0) | M0
            elif mn.startswith("global_load_lds"):
                self.r = allr(0) | M0
            elif "_load" in mn:
                self.w = R(0); self.r = allr(1)
                if "d16" in mn: self.r |= R(0)
            elif "atomic" in mn and " sc0 " in m_all:
                self.w = R(0); self.r = allr(0)
            else:
                self.r = allr(0)
        elif mn.startswith("s_load") or mn.startswith("s_buffer_load") or mn in ("s_memtime", "s_memrealtime"):
            self.kind = "smem"; self.w = R(0); self.r = allr(1)
        elif mn.startswith("s_cbranch") or mn == "s_branch":
            self.kind = "branch"; self.target = ops[0]
        elif mn in ("s_waitcnt", "s_nop", "s_barrier", "s_endpgm", "s_setprio", "s_sleep"):
            self.kind = mn
        elif mn.startswith("s_"):
            self.kind = "salu"
            if mn.startswith("s_cmp") or mn.startswith("s_bitcmp"):
                self.r = allr(0)
            elif "saveexec" in mn:
                self.w = R(0) | EXEC; self.r = allr(1) | EXEC
            else:
                self.w = R(0); self.r = allr(1)
                if mn.startswith("s_addk") or mn.startswith("s_mulk") or mn.startswith("s_cmov"): self.r |= R(0)
        else:
            raise ValueError("unknown instruction: " + text)
    def states(self):
        if self.kind in ("label", "dir"): return 0
        if self.kind == "s_nop": return int(self.ops[0], 0) + 1
        return 1

def isv(rs): return {x for x in rs if x[0] in "va"}
def iss(rs): return {x for x in rs if x[0] == "s"}

def need(p, c):
    n = 0
    if p.kind == "valu":
        wv = isv(p.w); ws = iss(p.w)
        if c.kind == "mfma" and wv & c.r: n = max(n, 2)
        if c.kind == "mfma" and (p.w & EXEC): n = max(n, 4)
        if c.kind == "valu":
            dpp = "dpp" in c.mn or "row_" in c.mods or "quad_perm" in c.mods or "wave_" in c.mods
            if dpp and wv & c.r: n = max(n, 2)
            if dpp and p.w & EXEC: n = max(n, 5)
            if c.mn.startswith("v_permlane") and wv & c.r: n = max(n, 2)
            if c.mn.startswith("v_permlane") and p.w & EXEC: n = max(n, 4)
            if c.mn.startswith(("v_readlane", "v_readfirstlane")) and wv & c.r: n = max(n, 1)
            if c.mn.startswith(("v_readlane", "v_readfirstlane", "v_writelane")) and p.w & EXEC: n = max(n, 4)
            if c.mn.startswith(("v_readlane", "v_writelane")) and ws & regs_of(c.ops[2]): n = max(n, 4)
            if ws & c.r: n = max(n, 2)
            if c.mn.startswith("v_div_fmas") and ws & VCC: n = max(n, 4)
            if p.mn.startswith(TRANS) and wv & c.r and not c.mn.startswith(TRANS): n = max(n, 1)
            if p.mn.startswith(TRANS) and wv & c.r: n = max(n, 1)
            if ("sdwa" in p.mn or "op_sel" in p.mods) and wv & (c.r | c.w): n = max(n, 1)
            if p.mn.startswith("v_dot") and wv & (c.r | c.w): n = max(n, 3)
        if c.kind in ("mfma", "ds", "vmem") and p.mn.startswith("v_dot") and wv & c.r: n = max(n, 3)
        if c.kind in ("ds", "vmem") and p.mn.startswith(TRANS) and wv & c.r: n = max(n, 1)
        if c.kind == "vmem" and ws & c.r: n = max(n, 5)
    if p.kind == "salu" and (p.w & M0) and c.kind in ("vmem", "ds") and (c.r & M0): n = max(n, 1)
    if p.kind == "mfma":
        ps = p.passes
        if c.kind == "mfma":
            if p.w & c.srcc:
                if p.w == c.srcc and ps == c.passes and ps > 2: pass
                elif p.w == c.srcc and ps == c.passes: n = max(n, 2)
                else: n = max(n, ps + 2)
            if p.w & c.ab: n = max(n, {2: 5, 4: 8, 8: 12}[ps])
            if (p.w & c.w) and not (p.w & c.srcc): n = max(n, ps + 2)
        elif c.kind == "valu":
            if p.w & (c.r | c.w): n = max(n, {2: 5, 4: 8, 8: 12}[ps])
            if p.srcc & c.w: n = max(n, ps - 1)
        elif c.kind in ("ds", "vmem"):
            if p.w & (c.r | c.w): n = max(n, {2: 5, 4: 8, 8: 12}[ps])
            if p.srcc & c.w: n = max(n, ps - 1)
    if p.kind == "vmem" and re.search(r"store_dwordx[34]|cmpswap_x2", p.mn):
        data = regs_of(p.ops[0]) if p.mn.startswith("buffer") else regs_of(p.ops[1])
        if data & c.w: n = max(n, 2 if c.kind == "valu" else 1)
    if p.kind == "ds" and re.search(r"ds_write_b(96|128)|ds_write2_b64", p.mn):
        data = set().union(*[regs_of(x) for x in p.ops[1:]])
        if data & c.w and c.kind == "valu": n = max(n, 1)
    return n

class Asm:
    def __init__(self):
        self.ins = []
    def __call__(self, text):
        for ln in text.split("\n"):
            if ln.strip() == "": continue
            self.ins.append(I(ln.strip()))
    def raw(self, text):
        i = I(""); i.text = text; self.ins.append(i)

    def autowait(self):
        ins = self.ins
        labels = {x.label: k for k, x in enumerate(ins) if x.label}
        entry = {}
        def merge(a, b):
            out = dict(a)
            for k, v in b.items():
                if k in out:
                    o = out[k]; out[k] = (v[0], min(o[1], v[1]), o[2] or v[2])
                else: out[k] = v
            return out
        for it in range(20):
            changed = False
            st = {}; smem_pending = False; dead = False
            for x in ins: x.pre = []
            for k, x in enumerate(ins):
                if x.kind == "label":
                    inc = entry.get(x.label, {})
                    if dead: st = dict(inc)
                    else: st = merge(st, inc)
                    st = {r: (c, 0, s) for r, (c, a, s) in st.items()}
                    dead = False
                    continue
                if x.kind == "dir":
                    if x.text.startswith(";@ready"):
                        for tok in x.text.split()[1:]:
                            for r in regs_of(tok): st.pop(r, None)
                    continue
                if x.kind == "s_waitcnt":
                    t = x.text.split(";")[0]
                    m = re.search(r"vmcnt\((\d+)\)", t); vm = int(m.group(1)) if m else None
                    m = re.search(r"lgkmcnt\((\d+)\)", t); lg = int(m.group(1)) if m else None
                    ns = {}
                    anysm = any(s for (c, a, s) in st.values())
                    for r, (c, a, s) in st.items():
                        if c == "vm" and vm is not None and a >= vm: continue
                        if c == "lg" and lg is not None and (lg == 0 or (a >= lg and not anysm)): continue
                        ns[r] = (c, a, s)
                    st = ns
                    continue
                touched = x.r | x.w
                if x.kind == "s_endpgm": touched = set()
                vm = None; lg = None
                anysm = any(s for (c, a, s) in st.values())
                for r in touched:
                    if r in st:
                        c, a, s = st[r]
                        if c == "vm": vm = a if vm is None else min(vm, a)
                        else:
                            a2 = 0 if anysm else a
                            lg = a2 if lg is None else min(lg, a2)
                if vm is not None or lg is not None:
                    parts = []
                    if vm is not None: vm = min(vm, 63); parts.append(f"vmcnt({vm})")
                    if lg is not None: lg = min(lg, 15); parts.append(f"lgkmcnt({lg})")
                    x.pre.append("s_waitcnt " + " ".join(parts))
                    ns = {}
                    for r, (c, a, s) in st.items():
                        if c == "vm" and vm is not None and a >= vm: continue
                        if c == "lg" and lg is not None and (lg == 0 or a >= lg): continue
                        ns[r] = (c, a, s)
                    st = ns
                if x.kind in ("vmem", "ds", "smem"):
                    cls = "vm" if x.kind == "vmem" else "lg"
                    inc = 1
                    st = {r: (c, a + (1 if c == cls else 0), s) for r, (c, a, s) in st.items()}
                    for r in x.w: st[r] = (cls, 0, x.kind == "smem")
                    if x.kind == "smem" and not x.w: pass
                if x.kind == "branch":
                    old = entry.get(x.target)
                    z = {r: (c, 0, s) for r, (c, a, s) in st.items()}
                    new = z if old is None else merge(old, z)
                    if new != old: entry[x.target] = new; changed = True
                    if x.mn == "s_branch": dead = True
                if x.kind == "s_endpgm": dead = True
            if not changed: break
        else:
            raise RuntimeError("autowait did not converge")
        out = []
        for x in ins:
            for p in x.pre: out.append(I(p + " ; auto"))
            x.pre = []
            out.append(x)
        self.ins = out

    def hazards(self):
        total = 0
        start = 0; clean_pass = False
        while True:
            ins = self.ins
            labels = {x.label: k for k, x in enumerate(ins) if x.label}
            br = {}
            for k, x in enumerate(ins):
                if x.kind == "branch": br.setdefault(x.target, []).append(k)
            fix = None
            for k in range(start, len(ins)):
                c = ins[k]
                if c.kind not in ("valu", "mfma", "ds", "vmem"): continue
                worst = 0
                stack = [(k - 1, 0)]; seen = set()
                while stack:
                    j, d = stack.pop()
                    while j >= 0 and d < 20:
                        if (j, d) in seen: break
                        seen.add((j, d))
                        p = ins[j]
                        if p.kind == "label":
                            for b in br.get(p.label, []): stack.append((b, d))
                            q = j - 1
                            while q >= 0 and ins[q].kind == "dir": q -= 1
                            if q >= 0 and (ins[q].mn in ("s_branch", "s_endpgm")): break
                        else:
                            n = need(p, c)
                            if n - d > worst: worst = n - d
                            d += p.states()
                        j -= 1
                if worst > 0:
                    fix = (k, worst); break
            if fix is None:
                if start == 0: break
                start = 0; continue
            k, n = fix
            start = k
            self.ins.insert(k, I(f"s_nop {n-1} ; hz"))
            total += n
        return total

    def finish(self):
        self.autowait()
        n = self.hazards()
        lines = []
        for x in self.ins:
            if x.kind == "label" or x.text.startswith(".") or x.text.startswith(";"): lines.append(x.text)
            else: lines.append("    " + x.text)
        return "\n".join(lines) + "\n", n
```

```python
import sys
from asmlib import *

P = dict(NB=208, DSTEARLY=8, PK=1)
for a in sys.argv[2:]:
    k, v = a.split("="); P[k] = int(v)

N = 50000; E = 800000
W = 250; EC = 3200
NB = P["NB"]; B = (N + NB - 1) // NB; G = (NB + 15) // 16
assert B <= 256 and G <= 13
K1T = 800
WS_W = 0; WS_WBYTES = 34816
WS_OFF = 0x10000
WS_REC = 0x60000
RECB = EC * 12
def magic(d, lim):
    for S in range(16, 32):
        M = -(-(1 << S) // d)
        if M < (1 << 24) and M * lim < (1 << 32) and all((x * M) >> S == x // d for x in range(lim)):
            return M, S
    raise RuntimeError
BM, BS = magic(NB, N)

NAME1 = "painn_bin_kernel"; NAME2 = "painn_msg_kernel"

def srd(A, d, lo, hi, size):
    A(f"s_mov_b32 s{d}, {lo}\ns_mov_b32 s{d+1}, {hi}\ns_mov_b32 s{d+2}, {size}\ns_mov_b32 s{d+3}, 0x20000")
def srd_off(A, d, base, off, size):
    A(f"s_add_u32 s{d}, s{base}, {off}\ns_addc_u32 s{d+1}, s{base+1}, 0\ns_mov_b32 s{d+2}, {size}\ns_mov_b32 s{d+3}, 0x20000")

def wave_scan(A, x):
    for m in ("row_shr:1 row_mask:0xf", "row_shr:2 row_mask:0xf", "row_shr:4 row_mask:0xf", "row_shr:8 row_mask:0xf",
              "row_bcast:15 row_mask:0xa", "row_bcast:31 row_mask:0xc"):
        A(f"v_add_u32_dpp v{x}, v{x}, v{x} {m} bank_mask:0xf")

def k1():
    A = Asm()
    A(f"""
    s_cmp_ge_u32 s2, {W+3}
    s_cbranch_scc1 K1_END
    s_load_dwordx4 s[4:7], s[0:1], 8
    s_load_dwordx2 s[8:9], s[0:1], 24
    s_load_dwordx2 s[10:11], s[0:1], 80
    s_cmp_ge_u32 s2, {W}
    s_cbranch_scc1 K1_PREP
    v_lshlrev_b32 v1, 4, v0
    v_and_b32 v2, 255, v0
    v_lshlrev_b32 v2, 2, v2
    v_mov_b32 v3, 0
    ds_write_b32 v2, v3
    s_mul_i32 s3, s2, {EC*4}
    s_waitcnt lgkmcnt(0)
    """)
    SRC, DST, POS, REC, OFF = 12, 16, 20, 24, 28
    srd_off(A, SRC, 6, "s3", EC*4)
    srd_off(A, DST, 8, "s3", EC*4)
    A(f"buffer_load_dwordx4 v[4:7], v1, s[{SRC}:{SRC+3}], 0 offen")
    A(f"buffer_load_dwordx4 v[8:11], v1, s[{DST}:{DST+3}], 0 offen")
    srd(A, POS, "s4", "s5", N*6)
    A(f"s_mul_i32 s3, s2, {RECB}\ns_add_u32 s3, s3, {WS_REC}")
    srd_off(A, REC, 10, "s3", RECB)
    A(f"s_lshl_b32 s3, s2, 10\ns_add_u32 s3, s3, {WS_OFF}")
    srd_off(A, OFF, 10, "s3", B*4)
    A(f"s_mov_b32 s32, 0xffff0000\ns_mov_b32 s33, {BM}\ns_mov_b32 s34, 0x3db90000")
    A("s_barrier")
    for j in range(8):
        A(f"v_mul_u32_u24 v{28+j}, 6, v{4+j}\nv_and_b32 v{28+j}, -4, v{28+j}")
        A(f"buffer_load_dwordx2 v[{12+2*j}:{13+2*j}], v{28+j}, s[{POS}:{POS+3}], 0 offen")
    A("v_mov_b32 v63, 1")
    for j in range(4):
        s, d, ps, pd = 4+j, 8+j, 12+2*j, 20+2*j
        r0, r1, r2, rk = 36+4*j, 37+4*j, 38+4*j, 39+4*j
        t = 52
        A(f"""
        v_lshlrev_b32 v{t}, 4, v{s}
        v_lshlrev_b32 v{t+1}, 4, v{d}
        v_lshl_or_b32 v{r0}, v{d}, 16, v{s}
        v_mul_u32_u24 v{28+j}, s33, v{d}
        v_lshrrev_b32 v{28+j}, {BS}, v{28+j}
        v_lshlrev_b32 v{28+j}, 2, v{28+j}
        v_alignbit_b32 v{ps}, v{ps+1}, v{ps}, v{t}
        v_lshrrev_b32 v{ps+1}, v{t}, v{ps+1}
        v_alignbit_b32 v{pd}, v{pd+1}, v{pd}, v{t+1}
        v_lshrrev_b32 v{pd+1}, v{t+1}, v{pd+1}
        v_lshlrev_b32 v{t}, 16, v{ps}
        v_lshlrev_b32 v{t+1}, 16, v{pd}
        v_sub_f32 v{t}, v{t}, v{t+1}
        v_and_b32 v{ps}, s32, v{ps}
        v_and_b32 v{pd}, s32, v{pd}
        v_sub_f32 v{t+1}, v{ps}, v{pd}
        v_lshlrev_b32 v{ps+1}, 16, v{ps+1}
        v_lshlrev_b32 v{pd+1}, 16, v{pd+1}
        v_sub_f32 v{t+2}, v{ps+1}, v{pd+1}
        v_cvt_pk_bf16_f32 v{r1}, v{t}, v{t+1}
        v_cvt_pk_bf16_f32 v{r2}, v{t+2}, v{t+2}
        v_lshlrev_b32 v{t}, 16, v{r1}
        v_and_b32 v{t+1}, s32, v{r1}
        v_and_b32 v{t+2}, s32, v{r2}
        v_mul_f32 v{t}, v{t}, v{t}
        v_mul_f32 v{t+1}, v{t+1}, v{t+1}
        v_mul_f32 v{t+2}, v{t+2}, v{t+2}
        v_cvt_pk_bf16_f32 v{t}, v{t}, v{t+1}
        v_cvt_pk_bf16_f32 v{t+2}, v{t+2}, v{t+2}
        v_and_b32 v{t+1}, s32, v{t}
        v_lshlrev_b32 v{t}, 16, v{t}
        v_and_b32 v{t+2}, s32, v{t+2}
        v_add_f32 v{t}, v{t}, v{t+1}
        v_add_f32 v{t}, v{t}, v{t+2}
        v_cvt_pk_bf16_f32 v{t}, v{t}, v{t}
        v_bfi_b32 v{r2}, s32, v{t}, v{r2}
        v_and_b32 v{t}, s32, v{t}
        v_subrev_u32 v{t}, 0x41c70000, v{t}
        v_cmp_le_u32 vcc, s34, v{t}
        s_and_saveexec_b64 s[{36+2*j}:{37+2*j}], vcc
        ds_add_rtn_u32 v{rk}, v{28+j}, v63
        s_mov_b64 s[44:45], exec
        s_mov_b64 exec, s[{36+2*j}:{37+2*j}]
        s_mov_b64 s[{36+2*j}:{37+2*j}], s[44:45]
        """)
    A("s_waitcnt lgkmcnt(0)\ns_barrier")
    A(f"""
    s_mov_b64 s[44:45], exec
    s_mov_b64 exec, -1
    v_mbcnt_lo_u32_b32 v1, -1, 0
    v_mbcnt_hi_u32_b32 v1, -1, v1
    v_lshlrev_b32 v1, 4, v1
    ds_read_b128 v[4:7], v1
    v_add_u32 v9, v4, v5
    v_add_u32 v10, v9, v6
    v_add_u32 v11, v10, v7
    v_mov_b32 v12, v11
    """)
    wave_scan(A, 12)
    A(f"""
    v_sub_u32 v12, v12, v11
    v_add_u32 v13, v12, v4
    v_add_u32 v14, v12, v9
    v_add_u32 v15, v12, v10
    ds_write_b128 v1, v[12:15] offset:1024
    v_lshl_or_b32 v4, v4, 16, v12
    v_lshl_or_b32 v5, v5, 16, v13
    v_lshl_or_b32 v6, v6, 16, v14
    v_lshl_or_b32 v7, v7, 16, v15
    v_readfirstlane_b32 s3, v0
    s_cmp_lg_u32 s3, 0
    s_cbranch_scc1 K1_NOOFF
    buffer_store_dwordx4 v[4:7], v1, s[{OFF}:{OFF+3}], 0 offen
    K1_NOOFF:
    s_mov_b64 exec, s[44:45]
    """)
    for j in range(4):
        A(f"ds_read_b32 v{16+j}, v{28+j} offset:1024")
    for j in range(4):
        r0 = 36+4*j
        A(f"""
        v_add_u32 v{16+j}, v{16+j}, v{r0+3}
        v_mul_u32_u24 v{16+j}, 12, v{16+j}
        s_mov_b64 exec, s[{36+2*j}:{37+2*j}]
        buffer_store_dwordx3 v[{r0}:{r0+2}], v{16+j}, s[{REC}:{REC+3}], 0 offen
        s_mov_b64 exec, s[44:45]
        """)
    A("s_endpgm")
    A(f"""
    K1_PREP:
    s_load_dwordx4 s[12:15], s[0:1], 40
    s_load_dwordx2 s[16:17], s[0:1], 56
    v_lshrrev_b32 v1, 6, v0
    v_readfirstlane_b32 s3, v1
    v_and_b32 v1, 15, v0
    v_bfe_u32 v2, v0, 4, 2
    v_and_b32 v3, 63, v0
    s_cmp_ge_u32 s3, 12
    s_cbranch_scc1 K1_END
    s_waitcnt lgkmcnt(0)
    """)
    srd(A, 20, "s12", "s13", 64*64*2)
    srd(A, 24, "s14", "s15", 64*192*2)
    srd(A, 28, "s16", "s17", 4*192*2)
    srd_off(A, 32, 10, WS_W, WS_WBYTES)
    A(f"""
    s_cmp_gt_u32 s2, {W}
    s_cbranch_scc1 K1_PW2
    s_cmp_ge_u32 s3, 8
    s_cbranch_scc1 K1_PWR
    s_and_b32 s36, s3, 1
    s_lshr_b32 s37, s3, 1
    s_lshl_b32 s36, s36, 12
    s_lshl_b32 s37, s37, 5
    s_add_u32 s36, s36, s37
    v_lshlrev_b32 v4, 10, v2
    v_lshl_add_u32 v4, v1, 1, v4
    """)
    for j in range(8):
        A(f"buffer_load_ushort v{8+j}, v4, s[20:23], s36 offen offset:{128*j}")
    A("s_lshl_b32 s36, s3, 10")
    A("s_branch K1_PACK")
    A(f"""
    K1_PW2:
    s_sub_u32 s36, s2, {W+1}
    s_mul_i32 s36, s36, 12
    s_add_u32 s3, s3, s36
    s_and_b32 s36, s3, 1
    s_lshr_b32 s37, s3, 1
    s_mul_i32 s38, s37, 43
    s_lshr_b32 s38, s38, 7
    s_mul_i32 s39, s38, 3
    s_sub_u32 s39, s37, s39
    s_mul_i32 s36, s36, {32*384}
    s_lshl_b32 s38, s38, 5
    s_lshl_b32 s39, s39, 7
    s_add_u32 s36, s36, s38
    s_add_u32 s36, s36, s39
    v_mul_u32_u24 v4, {4*384}, v2
    v_lshl_add_u32 v4, v1, 1, v4
    v_add_u32 v5, {16*384}, v4
    """)
    for j in range(8):
        A(f"buffer_load_ushort v{8+j}, v{4+(j>>2)}, s[24:27], s36 offen offset:{384*(j&3)}")
    A(f"""
    s_lshl_b32 s36, s3, 10
    s_add_u32 s36, s36, 8192
    K1_PACK:
    v_lshlrev_b32 v3, 4, v3
    v_lshl_or_b32 v8, v9, 16, v8
    v_lshl_or_b32 v9, v11, 16, v10
    v_lshl_or_b32 v10, v13, 16, v12
    v_lshl_or_b32 v11, v15, 16, v14
    buffer_store_dwordx4 v[8:11], v3, s[32:35], s36 offen
    s_endpgm
    K1_PWR:
    s_sub_u32 s3, s3, 8
    s_lshl_b32 s36, s3, 5
    v_min_u32 v2, 2, v2
    v_lshlrev_b32 v4, 7, v2
    v_lshl_add_u32 v4, v1, 1, v4
    """)
    for j in range(4):
        A(f"buffer_load_ushort v{8+j}, v4, s[28:31], s36 offen offset:{384*j}")
    A(f"""
    s_lshl_b32 s36, s3, 9
    s_add_u32 s36, s36, 32768
    v_lshlrev_b32 v3, 3, v3
    v_lshl_or_b32 v8, v9, 16, v8
    v_lshl_or_b32 v9, v11, 16, v10
    buffer_store_dwordx2 v[8:9], v3, s[32:35], s36 offen
    K1_END:
    s_endpgm
    """)
    return A, 64, 48, 2048

L_W1 = 0; L_W2 = 8192; L_WR = 32768
L_DESC = 34816; NBLK = 56; BLKB = 320
L_CNT = L_DESC + NBLK * BLKB
L_BUF = (L_CNT + 128 + 255) // 256 * 256
ROWP = 1056; BUFB = 8 * ROWP
L_END = L_BUF + G * BUFB
CAP = min(NBLK * 16 - G * 15, G * 64) // 4 * 4
assert L_END <= 163840

def k2():
    A = Asm()
    SV, DR, OUT, OFF, REC, WW = 20, 24, 28, 32, 36, 40
    sWAVE, sBUF, sTOT, sBATCH, sWBASE, sCNT, sBLK, sNHT = 44, 45, 46, 47, 48, 49, 50, 51
    sHI, sF15, sNL2E, sNODE0, sFIRST = 52, 53, 54, 56, 57
    sEX = 58
    sFREQ = 14
    vW, vT, vS, vSH = 64, 65, 66, 67
    H = 68; SOP = 76; PP = 84; T = 86
    A(f"""
    s_cmp_ge_u32 s2, {B}
    s_cbranch_scc1 K2_END
    s_load_dwordx2 s[4:5], s[0:1], 0
    s_load_dwordx2 s[6:7], s[0:1], 64
    s_load_dwordx2 s[8:9], s[0:1], 80
    s_load_dwordx2 s[10:11], s[0:1], 32
    v_lshrrev_b32 v1, 6, v0
    v_and_b32 v2, 63, v0
    v_readfirstlane_b32 s{sWAVE}, v1
    v_lshlrev_b32 v{vW}, 4, v2
    v_mov_b32 v3, 0
    v_lshlrev_b32 v4, 2, v2
    ds_write_b32 v4, v3 offset:{L_CNT}
    s_mul_i32 s{sBUF}, s{sWAVE}, {BUFB}
    s_add_u32 s{sBUF}, s{sBUF}, {L_BUF}
    s_mul_i32 s{sNODE0}, s2, {NB}
    s_mov_b32 s{sBATCH}, 0
    s_mov_b32 s{sFIRST}, 1
    s_mov_b32 s{sHI}, 0xffff0000
    s_mov_b32 s{sF15}, 0x000f000f
    s_mov_b32 s{sNL2E}, 0xbfb8aa3b
    s_mov_b32 s{sNL2E+1}, 0xbfb8aa3b
    s_waitcnt lgkmcnt(0)
    s_load_dwordx2 s[12:13], s[10:11], 0
    """)
    srd_off(A, OFF, 8, WS_OFF, W * 1024)
    srd_off(A, REC, 8, WS_REC, W * RECB)
    srd_off(A, WW, 8, WS_W, WS_WBYTES)
    srd(A, SV, "s4", "s5", N * 512)
    A(f"""
    s_lshl_b32 s3, s{sWAVE}, 4
    s_add_u32 s3, s3, s{sNODE0}
    s_add_u32 s60, s{sNODE0}, {NB}
    s_min_u32 s60, s60, {N}
    s_sub_i32 s60, s60, s3
    s_max_i32 s60, s60, 0
    s_min_i32 s60, s60, 16
    s_lshl_b32 s60, s60, 9
    s_lshl_b32 s3, s3, 9
    """)
    srd_off(A, DR, 4, "s3", "s60")
    srd_off(A, OUT, 6, "s3", "s60")
    A(f"""
    v_and_b32 v5, 15, v2
    v_sub_u32 v{vSH}, 15, v5
    v_mul_u32_u24 v{vSH}, 0x10001, v{vSH}
    v_lshrrev_b32 v6, 4, v2
    v_and_b32 v7, 7, v2
    v_mul_u32_u24 v7, {ROWP}, v7
    v_bfe_u32 v8, v2, 3, 1
    v_lshl_add_u32 v7, v8, 9, v7
    v_lshl_add_u32 v7, v6, 4, v7
    v_add_u32 v{vS}, s{sBUF}, v7
    v_bfe_u32 v7, v2, 2, 3
    v_mul_u32_u24 v7, {ROWP}, v7
    v_lshrrev_b32 v8, 5, v2
    v_lshl_add_u32 v7, v8, 9, v7
    v_and_b32 v8, 3, v2
    v_lshl_add_u32 v7, v8, 3, v7
    v_add_u32 v{vT}, s{sBUF}, v7
    """)
    tA, tB, tC, tD = T, T+1, T+2, T+3
    def dst_dma(lo, hi):
        for i in range(lo, hi):
            A(f"s_add_u32 m0, s{sBUF}, {i*(ROWP-512)}")
            A(f"buffer_load_dwordx4 v{tD}, s[{DR}:{DR+3}], 0 offen offset:{i*512} lds")
    def dst_addr():
        A(f"""
        v_lshrrev_b32 v{tC}, 9, v{vW}
        v_and_b32 v{tD}, 0x1f0, v{vW}
        v_lshlrev_b32 v{tC}, 4, v{tC}
        v_xor_b32 v{tD}, v{tD}, v{tC}
        v_lshl_add_u32 v{tD}, v{tC}, 8, v{tD}
        """)
    A("K2_BATCH:")
    vO = T + 4
    A(f"""
    s_cmp_ge_u32 s{sWAVE}, 4
    s_cbranch_scc1 K2_A1
    s_lshl_b32 s3, s{sWAVE}, 16
    s_lshl_b32 s60, s2, 2
    s_add_u32 s3, s3, s60
    v_lshlrev_b32 v{tA}, 6, v{vW}
    buffer_load_dword v{vO}, v{tA}, s[{OFF}:{OFF+3}], s3 offen
    K2_A1:
    s_cmp_eq_u32 s{sFIRST}, 0
    s_cbranch_scc1 K2_NF
    """)
    for r in range(3):
        if r == 2:
            A(f"s_cmp_ge_u32 s{sWAVE}, {34-2*G}\ns_cbranch_scc1 K2_W3")
        A(f"s_add_u32 s3, s{sWAVE}, {r*G}\ns_lshl_b32 s3, s3, 10\ns_mov_b32 m0, s3")
        A(f"buffer_load_dwordx4 v{vW}, s[{WW}:{WW+3}], s3 offen lds")
    A("K2_W3:")
    assert 3 * G >= 34
    dst_addr(); dst_dma(0, P["DSTEARLY"])
    A(f"""
    s_waitcnt lgkmcnt(0)
    s_lshl_b32 s{sFREQ}, s12, 16
    s_and_b32 s{sFREQ+1}, s12, s{sHI}
    s_lshl_b32 s{sFREQ+2}, s13, 16
    s_and_b32 s{sFREQ+3}, s13, s{sHI}
    s_waitcnt vmcnt({3+P["DSTEARLY"]})
    s_barrier
    K2_A2:
    s_cmp_ge_u32 s{sWAVE}, 4
    s_cbranch_scc1 K2_B1
    """)
    vC, vSt, vB, vI, vE = T+5, T+6, T+7, T+8, T+9
    A(f"""
    v_lshrrev_b32 v{vC}, 16, v{vO}
    v_and_b32 v{vSt}, 0xffff, v{vO}
    v_mov_b32 v{vB}, v{vC}
    """)
    wave_scan(A, vB)
    A(f"""
    s_cmp_eq_u32 s{sFIRST}, 0
    s_cbranch_scc1 K2_B0
    v_readlane_b32 s3, v{vB}, 63
    v_mov_b32 v{tA}, {L_CNT+64}
    v_mov_b32 v{tB}, s3
    s_mov_b64 exec, 1
    ds_add_rtn_u32 v{tB}, v{tA}, v{tB}
    s_mov_b64 exec, -1
    v_readfirstlane_b32 s{sWBASE}, v{tB}
    K2_B0:
    v_sub_u32 v{vB}, v{vB}, v{vC}
    s_sub_u32 s3, s{sWBASE}, s{sBATCH}
    v_add_u32 v{vB}, s3, v{vB}
    v_sub_u32 v{vI}, 0, v{vB}
    v_max_i32 v{vI}, 0, v{vI}
    v_sub_u32 v{vE}, {CAP}, v{vB}
    v_min_i32 v{vE}, v{vE}, v{vC}
    v_lshrrev_b32 v{tA}, 4, v{vW}
    s_lshl_b32 s3, s{sWAVE}, 6
    v_add_u32 v{tA}, s3, v{tA}
    v_mul_u32_u24 v{tA}, {EC}, v{tA}
    v_add3_u32 v{tA}, v{tA}, v{vSt}, v{vI}
    v_mul_u32_u24 v{tA}, 12, v{tA}
    v_add_u32 v{vB}, v{vB}, v{vI}
    v_lshlrev_b32 v{vB}, 2, v{vB}
    K2_BL:
    v_cmp_lt_i32 vcc, v{vI}, v{vE}
    s_and_b64 exec, exec, vcc
    s_cbranch_execz K2_BX
    ds_write_b32 v{vB}, v{tA} offset:{L_DESC}
    v_add_u32 v{vI}, 1, v{vI}
    v_add_u32 v{vB}, 4, v{vB}
    v_add_u32 v{tA}, 12, v{tA}
    s_branch K2_BL
    K2_BX:
    s_mov_b64 exec, -1
    K2_B1:
    s_waitcnt lgkmcnt(0)
    s_barrier
    """)
    R0, R1, R2 = T+4, T+5, T+6
    vSO, vP0, vP1, vRXY, vRZ, vOH, vGA, vRK = T+8, T+10, T+11, T+12, T+13, T+14, T+15, T+16
    d, ri, fc, a0, a1, a2, a3 = T+18, T+19, T+20, T+21, T+22, T+23, T+24
    A(f"""
    v_mov_b32 v{tA}, {L_CNT+64}
    ds_read_b32 v{tA}, v{tA}
    v_lshrrev_b32 v{tB}, 2, v{vW}
    s_lshl_b32 s3, s{sWAVE}, 8
    v_add_u32 v{tB}, s3, v{tB}                 ; tid*4
    ds_read_b32 v{tC}, v{tB} offset:{L_DESC}
    v_readfirstlane_b32 s{sTOT}, v{tA}
    s_sub_u32 s3, s{sTOT}, s{sBATCH}
    s_min_u32 s3, s3, {CAP}
    s_lshl_b32 s3, s3, 2
    v_cmp_gt_u32 vcc, s3, v{tB}
    s_mov_b64 s[{sEX}:{sEX+1}], vcc
    s_mov_b64 exec, vcc
    buffer_load_dwordx3 v[{R0}:{R2}], v{tC}, s[{REC}:{REC+3}], 0 offen
    s_mov_b64 exec, -1
    """)
    if P["DSTEARLY"] < 8:
        A(f"s_cmp_eq_u32 s{sFIRST}, 0\ns_cbranch_scc1 K2_C1")
        dst_addr(); dst_dma(P["DSTEARLY"], 8)
        A(f"s_waitcnt vmcnt({8-P['DSTEARLY']})\n;@ready v[{R0}:{R2}]")
        A("K2_C1:")
    def rnd(x):
        A(f"v_cvt_pk_bf16_f32 v{x}, v{x}, v{x}\nv_and_b32 v{x}, s{sHI}, v{x}")
    def rnd2(x, y):
        A(f"v_cvt_pk_bf16_f32 v{y}, v{x}, v{y}\nv_lshlrev_b32 v{x}, 16, v{y}\nv_and_b32 v{y}, s{sHI}, v{y}")
    A(f"""
    v_and_b32 v{d}, s{sHI}, v{R2}
    v_add_f32 v{d}, 0x322bcc77, v{d}
    v_lshrrev_b32 v{vGA}, 16, v{R0}
    v_subrev_u32 v{vGA}, s{sNODE0}, v{vGA}
    v_and_b32 v{vOH}, 15, v{vGA}
    v_lshlrev_b32 v{vOH}, v{vOH}, 1
    v_lshrrev_b32 v{vGA}, 4, v{vGA}
    v_lshlrev_b32 v{vGA}, 2, v{vGA}
    v_mov_b32 v{vRK}, 1
    s_mov_b64 exec, s[{sEX}:{sEX+1}]
    ds_add_rtn_u32 v{vRK}, v{vGA}, v{vRK} offset:{L_CNT}
    s_mov_b64 exec, -1
    v_and_b32 v{vSO}, 0xffff, v{R0}
    v_lshlrev_b32 v{vSO}, 9, v{vSO}
    """.replace(f"v_lshlrev_b32 v{vOH}, v{vOH}, 1", f"v_lshlrev_b32_e64 v{vOH}, v{vOH}, 1"))
    rnd(d)
    A(f"v_sqrt_f32 v{d}, v{d}")
    rnd(d)
    A(f"""
    v_rcp_f32 v{ri}, v{d}
    v_mul_f32 v{fc}, 0x40490fdb, v{d}
    v_mul_f32 v{a0}, s{sFREQ}, v{d}
    v_mul_f32 v{a1}, s{sFREQ+1}, v{d}
    v_mul_f32 v{a2}, s{sFREQ+2}, v{d}
    v_mul_f32 v{a3}, s{sFREQ+3}, v{d}
    """)
    rnd(fc); rnd2(a0, a1); rnd2(a2, a3)
    A(f"v_mul_f32 v{fc}, 0x3e4ccccd, v{fc}")
    rnd(fc)
    for x in (fc, a0, a1, a2, a3):
        A(f"v_mul_f32 v{x}, 0.15915494, v{x}")
    for x in (a0, a1, a2, a3):
        A(f"v_fract_f32 v{x}, v{x}")
    A(f"v_cos_f32 v{fc}, v{fc}")
    for x in (a0, a1, a2, a3):
        A(f"v_sin_f32 v{x}, v{x}")
    rnd(fc); rnd2(a0, a1); rnd2(a2, a3)
    A(f"v_add_f32 v{fc}, 1.0, v{fc}")
    for x in (a0, a1, a2, a3):
        A(f"v_mul_f32 v{x}, v{x}, v{ri}")
    rnd(fc); rnd2(a0, a1); rnd2(a2, a3)
    A(f"v_mul_f32 v{fc}, 0.5, v{fc}")
    for x in (a0, a1, a2, a3):
        A(f"v_mul_f32 v{x}, v{x}, v{fc}")
    A(f"""
    v_cvt_pk_bf16_f32 v{vP0}, v{a0}, v{a1}
    v_cvt_pk_bf16_f32 v{vP1}, v{a2}, v{a3}
    v_lshlrev_b32 v{a0}, 16, v{R1}
    v_and_b32 v{a1}, s{sHI}, v{R1}
    v_lshlrev_b32 v{a2}, 16, v{R2}
    v_mul_f32 v{a0}, v{a0}, v{ri}
    v_mul_f32 v{a1}, v{a1}, v{ri}
    v_mul_f32 v{a2}, v{a2}, v{ri}
    v_cvt_pk_bf16_f32 v{vRXY}, v{a0}, v{a1}
    v_cvt_pk_bf16_f32 v{vRZ}, v{a2}, v{a2}
    s_waitcnt lgkmcnt(0)
    s_barrier
    """)
    A(f"""
    v_bfe_u32 v{tA}, v{vW}, 4, 4
    v_lshlrev_b32 v{tB}, 2, v{tA}
    ds_read_b32 v{tB}, v{tB} offset:{L_CNT}
    v_add_u32 v{tC}, 15, v{tB}
    v_and_b32 v{tC}, -16, v{tC}
    v_mov_b32 v{tD}, v{tC}
    """)
    for m in (1, 2, 4, 8):
        A(f"v_add_u32_dpp v{tD}, v{tD}, v{tD} row_shr:{m} row_mask:0xf bank_mask:0xf")
    A(f"""
    v_sub_u32 v{tD}, v{tD}, v{tC}
    ds_bpermute_b32 v{tC}, v{vGA}, v{tD}
    v_readlane_b32 s{sCNT}, v{tB}, s{sWAVE}
    v_readlane_b32 s{sBLK}, v{tD}, s{sWAVE}
    v_add_u32 v{vRK}, v{vRK}, v{tC}
    v_lshrrev_b32 v{tC}, 4, v{vRK}
    v_mul_u32_u24 v{tC}, {BLKB}, v{tC}
    v_and_b32 v{tD}, 15, v{vRK}
    v_lshl_add_u32 v{a0}, v{tD}, 2, v{tC}
    v_lshl_add_u32 v{a1}, v{tD}, 3, v{tC}
    v_lshrrev_b32 v{tD}, 2, v{tD}
    v_lshl_add_u32 v{a2}, v{tD}, 5, v{tC}
    v_and_b32 v{tD}, 3, v{vRK}
    v_lshl_add_u32 v{a2}, v{tD}, 1, v{a2}
    s_mov_b64 exec, s[{sEX}:{sEX+1}]
    ds_write_b32 v{a0}, v{vSO} offset:{L_DESC}
    ds_write_b64 v{a1}, v[{vP0}:{vP1}] offset:{L_DESC+64}
    ds_write_b16 v{a2}, v{vRXY} offset:{L_DESC+192}
    ds_write_b16_d16_hi v{a2}, v{vRXY} offset:{L_DESC+200}
    ds_write_b16 v{a2}, v{vRZ} offset:{L_DESC+208}
    ds_write_b16 v{a2}, v{vOH} offset:{L_DESC+216}
    s_mov_b64 exec, -1
    s_add_u32 s{sNHT}, s{sCNT}, 15
    s_lshr_b32 s{sNHT}, s{sNHT}, 4
    s_lshr_b32 s{sBLK}, s{sBLK}, 4
    s_mul_i32 s{sBLK}, s{sBLK}, {BLKB}
    s_add_u32 s{sBLK}, s{sBLK}, {L_DESC}
    s_and_b32 s3, s{sCNT}, 15
    s_cbranch_scc0 K2_D1
    s_lshr_b32 s60, s{sCNT}, 4
    s_mul_i32 s60, s60, {BLKB}
    s_add_u32 s60, s60, s{sBLK}
    v_lshl_add_u32 v{a0}, v{tA}, 2, s60
    v_lshl_add_u32 v{a1}, v{tA}, 3, s60
    v_lshrrev_b32 v{tD}, 2, v{tA}
    v_lshl_add_u32 v{a2}, v{tD}, 5, s60
    v_and_b32 v{tD}, 3, v{tA}
    v_lshl_add_u32 v{a2}, v{tD}, 1, v{a2}
    v_mov_b32 v{vSO}, 0x7ffffe00
    v_mov_b32 v{vP0}, 0
    v_mov_b32 v{vP1}, 0
    v_cmp_le_u32 vcc, s3, v{tA}
    s_mov_b64 exec, vcc
    ds_write_b32 v{a0}, v{vSO}
    ds_write_b64 v{a1}, v[{vP0}:{vP1}] offset:64
    ds_write_b16 v{a2}, v{vP0} offset:216
    s_mov_b64 exec, -1
    K2_D1:
    s_waitcnt lgkmcnt(0)
    s_barrier
    s_cmp_eq_u32 s{sFIRST}, 0
    s_cbranch_scc1 K2_MAIN
    """)
    def acc_addr(x):
        A(f"""
        v_bfe_u32 v{x}, v{vW}, 4, 3
        v_mul_u32_u24 v{x}, {ROWP}, v{x}
        v_bfe_u32 v{x+1}, v{vW}, 7, 1
        v_lshl_add_u32 v{x}, v{x+1}, 9, v{x}
        v_lshlrev_b32 v{x+1}, 1, v{x+1}
        v_bfe_u32 v{x+2}, v{vW}, 8, 2
        v_xor_b32 v{x+1}, v{x+1}, v{x+2}
        v_lshl_add_u32 v{x}, v{x+1}, 3, v{x}
        v_add_u32 v{x}, s{sBUF}, v{x}
        """)
    acc_addr(T)
    A("s_waitcnt vmcnt(0)")
    for q in range(16):
        A(f"ds_read_b64 v[{T+4+2*q}:{T+5+2*q}], v{T} offset:{32*q}")
    for q in range(16):
        for hlf in range(2):
            A(f"v_lshlrev_b32 v{4*q+2*hlf}, 16, v{T+4+2*q+hlf}\nv_and_b32 v{4*q+2*hlf+1}, s{sHI}, v{T+4+2*q+hlf}")
    A(f"""
    s_mov_b32 s{sFIRST}, 0
    K2_MAIN:
    s_cmp_eq_u32 s{sNHT}, 0
    s_cbranch_scc1 K2_NEXT
    K2_HT:
    """)
    SO = T + 4; Q = T + 12
    A(f"""
    v_bfe_u32 v{tA}, v{vW}, 9, 1
    v_lshl_add_u32 v{tA}, v{tA}, 5, s{sBLK}
    ds_read_b128 v[{SO}:{SO+3}], v{tA}
    ds_read_b128 v[{SO+4}:{SO+7}], v{tA} offset:16
    v_bfe_u32 v{tB}, v{vW}, 4, 4
    v_lshl_add_u32 v{tB}, v{tB}, 3, s{sBLK}
    v_bfe_u32 v{tC}, v{vW}, 8, 2
    v_lshl_add_u32 v{tC}, v{tC}, 5, s{sBLK}
    ds_read_b128 v[{Q}:{Q+3}], v{tC} offset:192
    ds_read_b128 v[{Q+4}:{Q+7}], v{tC} offset:208
    ds_read_b64 v[{PP}:{PP+1}], v{tB} offset:64
    v_and_b32 v{tD}, 0x1f0, v{vW}
    s_mov_b32 m0, s{sBUF}
    """)
    for i in range(8):
        A(f"v_add_u32 v{SO+i}, v{SO+i}, v{tD}")
        A(f"buffer_load_dwordx4 v{SO+i}, s[{SV}:{SV+3}], 0 offen lds")
        if i < 7: A(f"s_addk_i32 m0, {ROWP}")
    A(f"""
    v_pk_lshlrev_b16 v{Q+6}, v{vSH}, v{Q+6}
    v_pk_lshlrev_b16 v{Q+7}, v{vSH}, v{Q+7}
    v_pk_ashrrev_i16 v{Q+6}, s{sF15}, v{Q+6}
    v_pk_ashrrev_i16 v{Q+7}, s{sF15}, v{Q+7}
    v_and_b32 v{SOP}, 0x3f803f80, v{Q+6}
    v_and_b32 v{SOP+1}, 0x3f803f80, v{Q+7}
    """)
    for c in range(3):
        A(f"v_and_b32 v{SOP+2+2*c}, v{Q+6}, v{Q+2*c}\nv_and_b32 v{SOP+3+2*c}, v{Q+7}, v{Q+2*c+1}")
    D1 = T; WB = T + 16
    for o in range(6):
        A(f"ds_read_b128 v[{WB+4*o}:{WB+4*o+3}], v{vW} offset:{L_W1+1024*o}")
    A(f"""
    s_add_u32 s{sBLK}, s{sBLK}, {BLKB}
    s_sub_u32 s{sNHT}, s{sNHT}, 1
    s_waitcnt vmcnt(0)
    ds_read_b128 v[{H}:{H+3}], v{vS}
    ds_read_b128 v[{H+4}:{H+7}], v{vS} offset:64
    """)
    def mm32(dst, a, b, c):
        A(f"v_mfma_f32_16x16x32_bf16 v[{dst}:{dst+3}], v[{a}:{a+3}], v[{b}:{b+3}], " + ("0" if c is None else f"v[{c}:{c+3}]"))
    def mm16(dst, a, b):
        A(f"v_mfma_f32_16x16x16_bf16 v[{dst}:{dst+3}], v[{a}:{a+1}], v[{b}:{b+1}], v[{dst}:{dst+3}]")
    slot = [WB + 4*o for o in range(6)] + [WB, WB + 4]
    for o in range(8):
        u, t = o >> 1, o & 1
        mm32(D1 + 4*u, slot[o], H + 4*t, None if t == 0 else D1 + 4*u)
        if o < 2:
            A(f"ds_read_b128 v[{slot[6+o]}:{slot[6+o]+3}], v{vW} offset:{L_W1+1024*(6+o)}")
    WF = T; PHI = T + 16; SL = [T + 28, T + 32, T + 36]; WR = T + 40
    E1 = T + 16
    def w2off(ct, ty, t): return L_W2 + 1024 * ((ct * 3 + ty) * 2 + t)
    for u in range(4):
        x = D1 + 4*u; e = E1 + 4*(u & 1)
        if P["PK"]:
            A(f"v_pk_mul_f32 v[{e}:{e+1}], v[{x}:{x+1}], s[{sNL2E}:{sNL2E+1}]")
            A(f"v_pk_mul_f32 v[{e+2}:{e+3}], v[{x+2}:{x+3}], s[{sNL2E}:{sNL2E+1}]")
        else:
            for i in range(4): A(f"v_mul_f32 v{e+i}, s{sNL2E}, v{x+i}")
        for i in range(4): A(f"v_exp_f32 v{e+i}, v{e+i}")
        if P["PK"]:
            A(f"v_pk_add_f32 v[{e}:{e+1}], v[{e}:{e+1}], 1.0 op_sel_hi:[1,0]")
            A(f"v_pk_add_f32 v[{e+2}:{e+3}], v[{e+2}:{e+3}], 1.0 op_sel_hi:[1,0]")
        else:
            for i in range(4): A(f"v_add_f32 v{e+i}, 1.0, v{e+i}")
        for i in range(4): A(f"v_rcp_f32 v{e+i}, v{e+i}")
        mul4(A, e, e, x)
        A(f"v_cvt_pk_bf16_f32 v{H+2*u}, v{e}, v{e+1}\nv_cvt_pk_bf16_f32 v{H+2*u+1}, v{e+2}, v{e+3}")
        if u == 0:
            A(f"v_lshrrev_b32 v{WR}, 1, v{vW}")
            A(f"ds_read_b64 v[{WR}:{WR+1}], v{WR} offset:{L_WR}")
            A(f"ds_read_b128 v[{SL[0]}:{SL[0]+3}], v{vW} offset:{w2off(0,0,0)}")
            A(f"ds_read_b128 v[{SL[1]}:{SL[1]+3}], v{vW} offset:{w2off(0,0,1)}")
            A(f"ds_read_b128 v[{SL[2]}:{SL[2]+3}], v{vW} offset:{w2off(0,1,0)}")
    for ct in range(4):
        s0, s1, s2 = SL
        A(f"v_mfma_f32_16x16x4_4b_bf16 v[{WF}:{WF+15}], v[{PP}:{PP+1}], v[{WR}:{WR+1}], 0")
        mm32(PHI, H, s0, None)
        A(f"ds_read_b128 v[{s0}:{s0+3}], v{vW} offset:{w2off(ct,1,1)}")
        mm32(PHI, H + 4, s1, PHI)
        A(f"ds_read_b128 v[{s1}:{s1+3}], v{vW} offset:{w2off(ct,2,0)}")
        mm32(PHI + 4, H, s2, None)
        A(f"ds_read_b128 v[{s2}:{s2+3}], v{vW} offset:{w2off(ct,2,1)}")
        mm32(PHI + 4, H + 4, s0, PHI + 4)
        A(f"ds_read_b64_tr_b16 v[{s0}:{s0+1}], v{vT} offset:{128+32*ct}")
        A(f"ds_read_b64_tr_b16 v[{s0+2}:{s0+3}], v{vT} offset:{256+32*ct}")
        mm32(PHI + 8, H, s1, None)
        A(f"ds_read_b64_tr_b16 v[{s1}:{s1+1}], v{vT} offset:{384+32*ct}")
        mm32(PHI + 8, H + 4, s2, PHI + 8)
        if ct < 3:
            A(f"ds_read_b128 v[{s2}:{s2+3}], v{vW} offset:{w2off(ct+1,0,0)}")
            A(f"v_lshrrev_b32 v{WR}, 1, v{vW}")
            A(f"ds_read_b64 v[{WR}:{WR+1}], v{WR} offset:{L_WR+512*(ct+1)}")
        mul4(A, PHI, PHI, WF)
        A(f"v_cvt_pk_bf16_f32 v{WF}, v{PHI}, v{PHI+1}\nv_cvt_pk_bf16_f32 v{WF+1}, v{PHI+2}, v{PHI+3}")
        mul4(A, PHI + 4, PHI + 4, WF + 4)
        mm16(4*ct, WF, SOP)
        mul4(A, PHI + 8, PHI + 8, WF + 8)
        A(f"v_cvt_pk_bf16_f32 v{WF+2}, v{PHI+8}, v{PHI+9}\nv_cvt_pk_bf16_f32 v{WF+3}, v{PHI+10}, v{PHI+11}")
        vt = [s0, s0 + 2, s1]
        for c in range(3):
            u = WF + 4 + 4*c
            A(f"""
            v_lshlrev_b32 v{u}, 16, v{vt[c]}
            v_and_b32 v{u+1}, s{sHI}, v{vt[c]}
            v_lshlrev_b32 v{u+2}, 16, v{vt[c]+1}
            v_and_b32 v{u+3}, s{sHI}, v{vt[c]+1}
            """)
            mm16(16*(c+1) + 4*ct, WF + 2, SOP + 2 + 2*c)
            if ct < 3 and c == 1:
                A(f"ds_read_b128 v[{s0}:{s0+3}], v{vW} offset:{w2off(ct+1,0,1)}")
            if ct < 3 and c == 2:
                A(f"ds_read_b128 v[{s1}:{s1+3}], v{vW} offset:{w2off(ct+1,1,0)}")
            mul4(A, u, u, PHI + 4)
            A(f"v_cvt_pk_bf16_f32 v{u}, v{u}, v{u+1}\nv_cvt_pk_bf16_f32 v{u+1}, v{u+2}, v{u+3}")
        for c in range(3):
            mm16(16*(c+1) + 4*ct, WF + 4 + 4*c, SOP)
        SL = [s2, s0, s1]
    A(f"""
    s_cmp_lg_u32 s{sNHT}, 0
    s_cbranch_scc1 K2_HT
    K2_NEXT:
    s_add_u32 s{sBATCH}, s{sBATCH}, {CAP}
    s_cmp_ge_u32 s{sBATCH}, s{sTOT}
    s_cbranch_scc1 K2_EPI
    s_barrier
    v_bfe_u32 v{tA}, v{vW}, 4, 4
    v_lshlrev_b32 v{tA}, 2, v{tA}
    v_mov_b32 v{tB}, 0
    ds_write_b32 v{tA}, v{tB} offset:{L_CNT}
    s_branch K2_BATCH
    K2_NF:
    s_waitcnt vmcnt(0)
    s_branch K2_A2
    K2_EPI:
    """)
    acc_addr(T)
    for q in range(16):
        x = T + 4 + 2*(q & 7)
        A(f"v_cvt_pk_bf16_f32 v{x}, v{4*q}, v{4*q+1}\nv_cvt_pk_bf16_f32 v{x+1}, v{4*q+2}, v{4*q+3}")
        A(f"ds_write_b64 v{T}, v[{x}:{x+1}] offset:{32*q}")
    A(f"v_add_u32 v{T}, s{sBUF}, v{vW}")
    for i in range(8):
        A(f"ds_read_b128 v[{4*i}:{4*i+3}], v{T} offset:{ROWP*i}")
    dst_addr()
    for i in range(8):
        A(f"buffer_store_dwordx4 v[{4*i}:{4*i+3}], v{tD}, s[{OUT}:{OUT+3}], 0 offen offset:{512*i}")
    A("K2_END:\ns_endpgm")
    return A, 128, 64, L_END

def mul4(A, d, a, b):
    if P["PK"]:
        A(f"v_pk_mul_f32 v[{d}:{d+1}], v[{a}:{a+1}], v[{b}:{b+1}]\nv_pk_mul_f32 v[{d+2}:{d+3}], v[{a+2}:{a+3}], v[{b+2}:{b+3}]")
    else:
        for i in range(4): A(f"v_mul_f32 v{d+i}, v{a+i}, v{b+i}")

def emit(path):
    ks = [(NAME1, k1(), (W + 3, K1T)), (NAME2, k2(), (B, 64 * G))]
    out = ["; PaiNN message passing: kernel 1 keeps the edges inside the cutoff and bins them by destination,",
           "; kernel 2 gathers source rows and accumulates the messages per destination node with MFMA.",
           "; Generated by a hand-written generator script."]
    for name, (A, vg, sg, lds), (grid, blk) in ks:
        out.append(f"; @launch kernel={name} grid=({grid},1,1) block=({blk},1,1) lds={lds}")
    out.append('.amdgcn_target "amdgcn-amd-amdhsa--gfx950"\n.text')
    for name, (A, vg, sg, lds), _ in ks:
        body, n = A.finish()
        print(name, "instructions", len(A.ins), "hazard states", n, file=sys.stderr)
        out.append(f".globl {name}\n.p2align 8\n.type {name},@function\n{name}:\n{body}")
    out.append('.section .rodata,"a"')
    for name, (A, vg, sg, lds), _ in ks:
        out.append(f""".p2align 6
.amdhsa_kernel {name}
  .amdhsa_next_free_vgpr {vg}
  .amdhsa_next_free_sgpr {sg}
  .amdhsa_accum_offset {vg}
  .amdhsa_group_segment_fixed_size 0
  .amdhsa_kernarg_size 88
  .amdhsa_user_sgpr_count 2
  .amdhsa_user_sgpr_kernarg_segment_ptr 1
  .amdhsa_system_sgpr_workgroup_id_x 1
  .amdhsa_float_denorm_mode_32 3
.end_amdhsa_kernel""")
    open(path, "w").write("\n".join(out) + "\n")

emit(sys.argv[1])
```

```python
import sys
from asmlib import *

P = dict(NB=208, DSTEARLY=8, PK=1)
for a in sys.argv[2:]:
    k, v = a.split("="); P[k] = int(v)

N = 50000; E = 800000
W = 250; EC = 3200
NB = P["NB"]; B = (N + NB - 1) // NB; G = (NB + 15) // 16
assert B <= 256 and G <= 13
K1T = 800
WS_W = 0; WS_WBYTES = 34816
WS_OFF = 0x10000
WS_REC = 0x60000
RECB = EC * 12
def magic(d, lim):
    for S in range(16, 32):
        M = -(-(1 << S) // d)
        if M < (1 << 24) and M * lim < (1 << 32) and all((x * M) >> S == x // d for x in range(lim)):
            return M, S
    raise RuntimeError
BM, BS = magic(NB, N)

NAME1 = "painn_bin_kernel"; NAME2 = "painn_msg_kernel"

def srd(A, d, lo, hi, size):
    A(f"s_mov_b32 s{d}, {lo}\ns_mov_b32 s{d+1}, {hi}\ns_mov_b32 s{d+2}, {size}\ns_mov_b32 s{d+3}, 0x20000")
def srd_off(A, d, base, off, size):
    A(f"s_add_u32 s{d}, s{base}, {off}\ns_addc_u32 s{d+1}, s{base+1}, 0\ns_mov_b32 s{d+2}, {size}\ns_mov_b32 s{d+3}, 0x20000")

def wave_scan(A, x):
    for m in ("row_shr:1 row_mask:0xf", "row_shr:2 row_mask:0xf", "row_shr:4 row_mask:0xf", "row_shr:8 row_mask:0xf",
              "row_bcast:15 row_mask:0xa", "row_bcast:31 row_mask:0xc"):
        A(f"v_add_u32_dpp v{x}, v{x}, v{x} {m} bank_mask:0xf")

def k1():
    A = Asm()
    A(f"""
    s_cmp_ge_u32 s2, {W+3}
    s_cbranch_scc1 K1_END
    s_load_dwordx4 s[4:7], s[0:1], 8
    s_load_dwordx2 s[8:9], s[0:1], 24
    s_load_dwordx2 s[10:11], s[0:1], 80
    s_cmp_ge_u32 s2, {W}
    s_cbranch_scc1 K1_PREP
    v_lshlrev_b32 v1, 4, v0
    v_and_b32 v2, 255, v0
    v_lshlrev_b32 v2, 2, v2
    v_mov_b32 v3, 0
    ds_write_b32 v2, v3
    s_mul_i32 s3, s2, {EC*4}
    s_waitcnt lgkmcnt(0)
    """)
    SRC, DST, POS, REC, OFF = 12, 16, 20, 24, 28
    srd_off(A, SRC, 6, "s3", EC*4)
    srd_off(A, DST, 8, "s3", EC*4)
    A(f"buffer_load_dwordx4 v[4:7], v1, s[{SRC}:{SRC+3}], 0 offen")
    A(f"buffer_load_dwordx4 v[8:11], v1, s[{DST}:{DST+3}], 0 offen")
    srd(A, POS, "s4", "s5", N*6)
    A(f"s_mul_i32 s3, s2, {RECB}\ns_add_u32 s3, s3, {WS_REC}")
    srd_off(A, REC, 10, "s3", RECB)
    A(f"s_lshl_b32 s3, s2, 10\ns_add_u32 s3, s3, {WS_OFF}")
    srd_off(A, OFF, 10, "s3", B*4)
    A(f"s_mov_b32 s32, 0xffff0000\ns_mov_b32 s33, {BM}\ns_mov_b32 s34, 0x3db90000")
    A("s_barrier")
    for j in range(8):
        A(f"v_mul_u32_u24 v{28+j}, 6, v{4+j}\nv_and_b32 v{28+j}, -4, v{28+j}")
        A(f"buffer_load_dwordx2 v[{12+2*j}:{13+2*j}], v{28+j}, s[{POS}:{POS+3}], 0 offen")
    A("v_mov_b32 v63, 1")
    for j in range(4):
        s, d, ps, pd = 4+j, 8+j, 12+2*j, 20+2*j
        r0, r1, r2, rk = 36+4*j, 37+4*j, 38+4*j, 39+4*j
        t = 52
        A(f"""
        v_lshlrev_b32 v{t}, 4, v{s}
        v_lshlrev_b32 v{t+1}, 4, v{d}
        v_lshl_or_b32 v{r0}, v{d}, 16, v{s}
        v_mul_u32_u24 v{28+j}, s33, v{d}
        v_lshrrev_b32 v{28+j}, {BS}, v{28+j}
        v_lshlrev_b32 v{28+j}, 2, v{28+j}
        v_alignbit_b32 v{ps}, v{ps+1}, v{ps}, v{t}
        v_lshrrev_b32 v{ps+1}, v{t}, v{ps+1}
        v_alignbit_b32 v{pd}, v{pd+1}, v{pd}, v{t+1}
        v_lshrrev_b32 v{pd+1}, v{t+1}, v{pd+1}
        v_lshlrev_b32 v{t}, 16, v{ps}
        v_lshlrev_b32 v{t+1}, 16, v{pd}
        v_sub_f32 v{t}, v{t}, v{t+1}
        v_and_b32 v{ps}, s32, v{ps}
        v_and_b32 v{pd}, s32, v{pd}
        v_sub_f32 v{t+1}, v{ps}, v{pd}
        v_lshlrev_b32 v{ps+1}, 16, v{ps+1}
        v_lshlrev_b32 v{pd+1}, 16, v{pd+1}
        v_sub_f32 v{t+2}, v{ps+1}, v{pd+1}
        v_cvt_pk_bf16_f32 v{r1}, v{t}, v{t+1}
        v_cvt_pk_bf16_f32 v{r2}, v{t+2}, v{t+2}
        v_lshlrev_b32 v{t}, 16, v{r1}
        v_and_b32 v{t+1}, s32, v{r1}
        v_and_b32 v{t+2}, s32, v{r2}
        v_mul_f32 v{t}, v{t}, v{t}
        v_mul_f32 v{t+1}, v{t+1}, v{t+1}
        v_mul_f32 v{t+2}, v{t+2}, v{t+2}
        v_cvt_pk_bf16_f32 v{t}, v{t}, v{t+1}
        v_cvt_pk_bf16_f32 v{t+2}, v{t+2}, v{t+2}
        v_and_b32 v{t+1}, s32, v{t}
        v_lshlrev_b32 v{t}, 16, v{t}
        v_and_b32 v{t+2}, s32, v{t+2}
        v_add_f32 v{t}, v{t}, v{t+1}
        v_add_f32 v{t}, v{t}, v{t+2}
        v_cvt_pk_bf16_f32 v{t}, v{t}, v{t}
        v_bfi_b32 v{r2}, s32, v{t}, v{r2}
        v_and_b32 v{t}, s32, v{t}
        v_subrev_u32 v{t}, 0x41c70000, v{t}
        v_cmp_le_u32 vcc, s34, v{t}
        s_and_saveexec_b64 s[{36+2*j}:{37+2*j}], vcc
        ds_add_rtn_u32 v{rk}, v{28+j}, v63
        s_mov_b64 s[44:45], exec
        s_mov_b64 exec, s[{36+2*j}:{37+2*j}]
        s_mov_b64 s[{36+2*j}:{37+2*j}], s[44:45]
        """)
    A("s_waitcnt lgkmcnt(0)\ns_barrier")
    A(f"""
    s_mov_b64 s[44:45], exec
    s_mov_b64 exec, -1
    v_mbcnt_lo_u32_b32 v1, -1, 0
    v_mbcnt_hi_u32_b32 v1, -1, v1
    v_lshlrev_b32 v1, 4, v1
    ds_read_b128 v[4:7], v1
    v_add_u32 v9, v4, v5
    v_add_u32 v10, v9, v6
    v_add_u32 v11, v10, v7
    v_mov_b32 v12, v11
    """)
    wave_scan(A, 12)
    A(f"""
    v_sub_u32 v12, v12, v11
    v_add_u32 v13, v12, v4
    v_add_u32 v14, v12, v9
    v_add_u32 v15, v12, v10
    ds_write_b128 v1, v[12:15] offset:1024
    v_lshl_or_b32 v4, v4, 16, v12
    v_lshl_or_b32 v5, v5, 16, v13
    v_lshl_or_b32 v6, v6, 16, v14
    v_lshl_or_b32 v7, v7, 16, v15
    v_readfirstlane_b32 s3, v0
    s_cmp_lg_u32 s3, 0
    s_cbranch_scc1 K1_NOOFF
    buffer_store_dwordx4 v[4:7], v1, s[{OFF}:{OFF+3}], 0 offen
    K1_NOOFF:
    s_mov_b64 exec, s[44:45]
    """)
    for j in range(4):
        A(f"ds_read_b32 v{16+j}, v{28+j} offset:1024")
    for j in range(4):
        r0 = 36+4*j
        A(f"""
        v_add_u32 v{16+j}, v{16+j}, v{r0+3}
        v_mul_u32_u24 v{16+j}, 12, v{16+j}
        s_mov_b64 exec, s[{36+2*j}:{37+2*j}]
        buffer_store_dwordx3 v[{r0}:{r0+2}], v{16+j}, s[{REC}:{REC+3}], 0 offen
        s_mov_b64 exec, s[44:45]
        """)
    A("s_endpgm")
    A(f"""
    K1_PREP:
    s_load_dwordx4 s[12:15], s[0:1], 40
    s_load_dwordx2 s[16:17], s[0:1], 56
    v_lshrrev_b32 v1, 6, v0
    v_readfirstlane_b32 s3, v1
    v_and_b32 v1, 15, v0
    v_bfe_u32 v2, v0, 4, 2
    v_and_b32 v3, 63, v0
    s_cmp_ge_u32 s3, 12
    s_cbranch_scc1 K1_END
    s_waitcnt lgkmcnt(0)
    """)
    srd(A, 20, "s12", "s13", 64*64*2)
    srd(A, 24, "s14", "s15", 64*192*2)
    srd(A, 28, "s16", "s17", 4*192*2)
    srd_off(A, 32, 10, WS_W, WS_WBYTES)
    A(f"""
    s_cmp_gt_u32 s2, {W}
    s_cbranch_scc1 K1_PW2
    s_cmp_ge_u32 s3, 8
    s_cbranch_scc1 K1_PWR
    s_and_b32 s36, s3, 1
    s_lshr_b32 s37, s3, 1
    s_lshl_b32 s36, s36, 12
    s_lshl_b32 s37, s37, 5
    s_add_u32 s36, s36, s37
    v_lshlrev_b32 v4, 10, v2
    v_lshl_add_u32 v4, v1, 1, v4
    """)
    for j in range(8):
        A(f"buffer_load_ushort v{8+j}, v4, s[20:23], s36 offen offset:{128*j}")
    A("s_lshl_b32 s36, s3, 10")
    A("s_branch K1_PACK")
    A(f"""
    K1_PW2:
    s_sub_u32 s36, s2, {W+1}
    s_mul_i32 s36, s36, 12
    s_add_u32 s3, s3, s36
    s_and_b32 s36, s3, 1
    s_lshr_b32 s37, s3, 1
    s_mul_i32 s38, s37, 43
    s_lshr_b32 s38, s38, 7
    s_mul_i32 s39, s38, 3
    s_sub_u32 s39, s37, s39
    s_mul_i32 s36, s36, {32*384}
    s_lshl_b32 s38, s38, 5
    s_lshl_b32 s39, s39, 7
    s_add_u32 s36, s36, s38
    s_add_u32 s36, s36, s39
    v_mul_u32_u24 v4, {4*384}, v2
    v_lshl_add_u32 v4, v1, 1, v4
    v_add_u32 v5, {16*384}, v4
    """)
    for j in range(8):
        A(f"buffer_load_ushort v{8+j}, v{4+(j>>2)}, s[24:27], s36 offen offset:{384*(j&3)}")
    A(f"""
    s_lshl_b32 s36, s3, 10
    s_add_u32 s36, s36, 8192
    K1_PACK:
    v_lshlrev_b32 v3, 4, v3
    v_lshl_or_b32 v8, v9, 16, v8
    v_lshl_or_b32 v9, v11, 16, v10
    v_lshl_or_b32 v10, v13, 16, v12
    v_lshl_or_b32 v11, v15, 16, v14
    buffer_store_dwordx4 v[8:11], v3, s[32:35], s36 offen
    s_endpgm
    K1_PWR:
    s_sub_u32 s3, s3, 8
    s_lshl_b32 s36, s3, 5
    v_min_u32 v2, 2, v2
    v_lshlrev_b32 v4, 7, v2
    v_lshl_add_u32 v4, v1, 1, v4
    """)
    for j in range(4):
        A(f"buffer_load_ushort v{8+j}, v4, s[28:31], s36 offen offset:{384*j}")
    A(f"""
    s_lshl_b32 s36, s3, 9
    s_add_u32 s36, s36, 32768
    v_lshlrev_b32 v3, 3, v3
    v_lshl_or_b32 v8, v9, 16, v8
    v_lshl_or_b32 v9, v11, 16, v10
    buffer_store_dwordx2 v[8:9], v3, s[32:35], s36 offen
    K1_END:
    s_endpgm
    """)
    return A, 64, 48, 2048

L_W1 = 0; L_W2 = 8192; L_WR = 32768
L_DESC = 34816; NBLK = 56; BLKB = 320
L_CNT = L_DESC + NBLK * BLKB
L_BUF = (L_CNT + 128 + 255) // 256 * 256
ROWP = 1056; BUFB = 8 * ROWP
L_END = L_BUF + G * BUFB
CAP = min(NBLK * 16 - G * 15, G * 64) // 4 * 4
assert L_END <= 163840

def k2():
    A = Asm()
    SV, DR, OUT, OFF, REC, WW = 20, 24, 28, 32, 36, 40
    sWAVE, sBUF, sTOT, sBATCH, sWBASE, sCNT, sBLK, sNHT = 44, 45, 46, 47, 48, 49, 50, 51
    sHI, sF15, sNL2E, sNODE0, sFIRST = 52, 53, 54, 56, 57
    sEX = 58
    sFREQ = 14
    vW, vT, vS, vSH = 64, 65, 66, 67
    H = 68; SOP = 76; PP = 84; T = 86
    A(f"""
    s_cmp_ge_u32 s2, {B}
    s_cbranch_scc1 K2_END
    s_load_dwordx2 s[4:5], s[0:1], 0
    s_load_dwordx2 s[6:7], s[0:1], 64
    s_load_dwordx2 s[8:9], s[0:1], 80
    s_load_dwordx2 s[10:11], s[0:1], 32
    v_lshrrev_b32 v1, 6, v0
    v_and_b32 v2, 63, v0
    v_readfirstlane_b32 s{sWAVE}, v1
    v_lshlrev_b32 v{vW}, 4, v2
    v_mov_b32 v3, 0
    v_lshlrev_b32 v4, 2, v2
    ds_write_b32 v4, v3 offset:{L_CNT}
    s_mul_i32 s{sBUF}, s{sWAVE}, {BUFB}
    s_add_u32 s{sBUF}, s{sBUF}, {L_BUF}
    s_mul_i32 s{sNODE0}, s2, {NB}
    s_mov_b32 s{sBATCH}, 0
    s_mov_b32 s{sFIRST}, 1
    s_mov_b32 s{sHI}, 0xffff0000
    s_mov_b32 s{sF15}, 0x000f000f
    s_mov_b32 s{sNL2E}, 0xbfb8aa3b
    s_mov_b32 s{sNL2E+1}, 0xbfb8aa3b
    s_waitcnt lgkmcnt(0)
    s_load_dwordx2 s[12:13], s[10:11], 0
    """)
    srd_off(A, OFF, 8, WS_OFF, W * 1024)
    srd_off(A, REC, 8, WS_REC, W * RECB)
    srd_off(A, WW, 8, WS_W, WS_WBYTES)
    srd(A, SV, "s4", "s5", N * 512)
    A(f"""
    s_lshl_b32 s3, s{sWAVE}, 4
    s_add_u32 s3, s3, s{sNODE0}
    s_add_u32 s60, s{sNODE0}, {NB}
    s_min_u32 s60, s60, {N}
    s_sub_i32 s60, s60, s3
    s_max_i32 s60, s60, 0
    s_min_i32 s60, s60, 16
    s_lshl_b32 s60, s60, 9
    s_lshl_b32 s3, s3, 9
    """)
    srd_off(A, DR, 4, "s3", "s60")
    srd_off(A, OUT, 6, "s3", "s60")
    A(f"""
    v_and_b32 v5, 15, v2
    v_sub_u32 v{vSH}, 15, v5
    v_mul_u32_u24 v{vSH}, 0x10001, v{vSH}
    v_lshrrev_b32 v6, 4, v2
    v_and_b32 v7, 7, v2
    v_mul_u32_u24 v7, {ROWP}, v7
    v_bfe_u32 v8, v2, 3, 1
    v_lshl_add_u32 v7, v8, 9, v7
    v_lshl_add_u32 v7, v6, 4, v7
    v_add_u32 v{vS}, s{sBUF}, v7
    v_bfe_u32 v7, v2, 2, 3
    v_mul_u32_u24 v7, {ROWP}, v7
    v_lshrrev_b32 v8, 5, v2
    v_lshl_add_u32 v7, v8, 9, v7
    v_and_b32 v8, 3, v2
    v_lshl_add_u32 v7, v8, 3, v7
    v_add_u32 v{vT}, s{sBUF}, v7
    """)
    tA, tB, tC, tD = T, T+1, T+2, T+3
    def dst_dma(lo, hi):
        for i in range(lo, hi):
            A(f"s_add_u32 m0, s{sBUF}, {i*(ROWP-512)}")
            A(f"buffer_load_dwordx4 v{tD}, s[{DR}:{DR+3}], 0 offen offset:{i*512} lds")
    def dst_addr():
        A(f"""
        v_lshrrev_b32 v{tC}, 9, v{vW}
        v_and_b32 v{tD}, 0x1f0, v{vW}
        v_lshlrev_b32 v{tC}, 4, v{tC}
        v_xor_b32 v{tD}, v{tD}, v{tC}
        v_lshl_add_u32 v{tD}, v{tC}, 8, v{tD}
        """)
    A("K2_BATCH:")
    vO = T + 4
    A(f"""
    s_cmp_ge_u32 s{sWAVE}, 4
    s_cbranch_scc1 K2_A1
    s_lshl_b32 s3, s{sWAVE}, 16
    s_lshl_b32 s60, s2, 2
    s_add_u32 s3, s3, s60
    v_lshlrev_b32 v{tA}, 6, v{vW}
    buffer_load_dword v{vO}, v{tA}, s[{OFF}:{OFF+3}], s3 offen
    K2_A1:
    s_cmp_eq_u32 s{sFIRST}, 0
    s_cbranch_scc1 K2_NF
    """)
    for r in range(3):
        if r == 2:
            A(f"s_cmp_ge_u32 s{sWAVE}, {34-2*G}\ns_cbranch_scc1 K2_W3")
        A(f"s_add_u32 s3, s{sWAVE}, {r*G}\ns_lshl_b32 s3, s3, 10\ns_mov_b32 m0, s3")
        A(f"buffer_load_dwordx4 v{vW}, s[{WW}:{WW+3}], s3 offen lds")
    A("K2_W3:")
    assert 3 * G >= 34
    dst_addr(); dst_dma(0, P["DSTEARLY"])
    A(f"""
    s_waitcnt lgkmcnt(0)
    s_lshl_b32 s{sFREQ}, s12, 16
    s_and_b32 s{sFREQ+1}, s12, s{sHI}
    s_lshl_b32 s{sFREQ+2}, s13, 16
    s_and_b32 s{sFREQ+3}, s13, s{sHI}
    s_waitcnt vmcnt({3+P["DSTEARLY"]})
    s_barrier
    K2_A2:
    s_cmp_ge_u32 s{sWAVE}, 4
    s_cbranch_scc1 K2_B1
    """)
    vC, vSt, vB, vI, vE = T+5, T+6, T+7, T+8, T+9
    A(f"""
    v_lshrrev_b32 v{vC}, 16, v{vO}
    v_and_b32 v{vSt}, 0xffff, v{vO}
    v_mov_b32 v{vB}, v{vC}
    """)
    wave_scan(A, vB)
    A(f"""
    s_cmp_eq_u32 s{sFIRST}, 0
    s_cbranch_scc1 K2_B0
    v_readlane_b32 s3, v{vB}, 63
    v_mov_b32 v{tA}, {L_CNT+64}
    v_mov_b32 v{tB}, s3
    s_mov_b64 exec, 1
    ds_add_rtn_u32 v{tB}, v{tA}, v{tB}
    s_mov_b64 exec, -1
    v_readfirstlane_b32 s{sWBASE}, v{tB}
    K2_B0:
    v_sub_u32 v{vB}, v{vB}, v{vC}
    s_sub_u32 s3, s{sWBASE}, s{sBATCH}
    v_add_u32 v{vB}, s3, v{vB}
    v_sub_u32 v{vI}, 0, v{vB}
    v_max_i32 v{vI}, 0, v{vI}
    v_sub_u32 v{vE}, {CAP}, v{vB}
    v_min_i32 v{vE}, v{vE}, v{vC}
    v_lshrrev_b32 v{tA}, 4, v{vW}
    s_lshl_b32 s3, s{sWAVE}, 6
    v_add_u32 v{tA}, s3, v{tA}
    v_mul_u32_u24 v{tA}, {EC}, v{tA}
    v_add3_u32 v{tA}, v{tA}, v{vSt}, v{vI}
    v_mul_u32_u24 v{tA}, 12, v{tA}
    v_add_u32 v{vB}, v{vB}, v{vI}
    v_lshlrev_b32 v{vB}, 2, v{vB}
    K2_BL:
    v_cmp_lt_i32 vcc, v{vI}, v{vE}
    s_and_b64 exec, exec, vcc
    s_cbranch_execz K2_BX
    ds_write_b32 v{vB}, v{tA} offset:{L_DESC}
    v_add_u32 v{vI}, 1, v{vI}
    v_add_u32 v{vB}, 4, v{vB}
    v_add_u32 v{tA}, 12, v{tA}
    s_branch K2_BL
    K2_BX:
    s_mov_b64 exec, -1
    K2_B1:
    s_waitcnt lgkmcnt(0)
    s_barrier
    """)
    R0, R1, R2 = T+4, T+5, T+6
    vSO, vP0, vP1, vRXY, vRZ, vOH, vGA, vRK = T+8, T+10, T+11, T+12, T+13, T+14, T+15, T+16
    d, ri, fc, a0, a1, a2, a3 = T+18, T+19, T+20, T+21, T+22, T+23, T+24
    A(f"""
    v_mov_b32 v{tA}, {L_CNT+64}
    ds_read_b32 v{tA}, v{tA}
    v_lshrrev_b32 v{tB}, 2, v{vW}
    s_lshl_b32 s3, s{sWAVE}, 8
    v_add_u32 v{tB}, s3, v{tB}                 ; tid*4
    ds_read_b32 v{tC}, v{tB} offset:{L_DESC}
    v_readfirstlane_b32 s{sTOT}, v{tA}
    s_sub_u32 s3, s{sTOT}, s{sBATCH}
    s_min_u32 s3, s3, {CAP}
    s_lshl_b32 s3, s3, 2
    v_cmp_gt_u32 vcc, s3, v{tB}
    s_mov_b64 s[{sEX}:{sEX+1}], vcc
    s_mov_b64 exec, vcc
    buffer_load_dwordx3 v[{R0}:{R2}], v{tC}, s[{REC}:{REC+3}], 0 offen
    s_mov_b64 exec, -1
    """)
    if P["DSTEARLY"] < 8:
        A(f"s_cmp_eq_u32 s{sFIRST}, 0\ns_cbranch_scc1 K2_C1")
        dst_addr(); dst_dma(P["DSTEARLY"], 8)
        A(f"s_waitcnt vmcnt({8-P['DSTEARLY']})\n;@ready v[{R0}:{R2}]")
        A("K2_C1:")
    def rnd(x):
        A(f"v_cvt_pk_bf16_f32 v{x}, v{x}, v{x}\nv_and_b32 v{x}, s{sHI}, v{x}")
    def rnd2(x, y):
        A(f"v_cvt_pk_bf16_f32 v{y}, v{x}, v{y}\nv_lshlrev_b32 v{x}, 16, v{y}\nv_and_b32 v{y}, s{sHI}, v{y}")
    A(f"""
    v_and_b32 v{d}, s{sHI}, v{R2}
    v_add_f32 v{d}, 0x322bcc77, v{d}
    v_lshrrev_b32 v{vGA}, 16, v{R0}
    v_subrev_u32 v{vGA}, s{sNODE0}, v{vGA}
    v_and_b32 v{vOH}, 15, v{vGA}
    v_lshlrev_b32 v{vOH}, v{vOH}, 1
    v_lshrrev_b32 v{vGA}, 4, v{vGA}
    v_lshlrev_b32 v{vGA}, 2, v{vGA}
    v_mov_b32 v{vRK}, 1
    s_mov_b64 exec, s[{sEX}:{sEX+1}]
    ds_add_rtn_u32 v{vRK}, v{vGA}, v{vRK} offset:{L_CNT}
    s_mov_b64 exec, -1
    v_and_b32 v{vSO}, 0xffff, v{R0}
    v_lshlrev_b32 v{vSO}, 9, v{vSO}
    """.replace(f"v_lshlrev_b32 v{vOH}, v{vOH}, 1", f"v_lshlrev_b32_e64 v{vOH}, v{vOH}, 1"))
    rnd(d)
    A(f"v_sqrt_f32 v{d}, v{d}")
    rnd(d)
    A(f"""
    v_rcp_f32 v{ri}, v{d}
    v_mul_f32 v{fc}, 0x40490fdb, v{d}
    v_mul_f32 v{a0}, s{sFREQ}, v{d}
    v_mul_f32 v{a1}, s{sFREQ+1}, v{d}
    v_mul_f32 v{a2}, s{sFREQ+2}, v{d}
    v_mul_f32 v{a3}, s{sFREQ+3}, v{d}
    """)
    rnd(fc); rnd2(a0, a1); rnd2(a2, a3)
    A(f"v_mul_f32 v{fc}, 0x3e4ccccd, v{fc}")
    rnd(fc)
    for x in (fc, a0, a1, a2, a3):
        A(f"v_mul_f32 v{x}, 0.15915494, v{x}")
    for x in (a0, a1, a2, a3):
        A(f"v_fract_f32 v{x}, v{x}")
    A(f"v_cos_f32 v{fc}, v{fc}")
    for x in (a0, a1, a2, a3):
        A(f"v_sin_f32 v{x}, v{x}")
    rnd(fc); rnd2(a0, a1); rnd2(a2, a3)
    A(f"v_add_f32 v{fc}, 1.0, v{fc}")
    for x in (a0, a1, a2, a3):
        A(f"v_mul_f32 v{x}, v{x}, v{ri}")
    rnd(fc); rnd2(a0, a1); rnd2(a2, a3)
    A(f"v_mul_f32 v{fc}, 0.5, v{fc}")
    for x in (a0, a1, a2, a3):
        A(f"v_mul_f32 v{x}, v{x}, v{fc}")
    A(f"""
    v_cvt_pk_bf16_f32 v{vP0}, v{a0}, v{a1}
    v_cvt_pk_bf16_f32 v{vP1}, v{a2}, v{a3}
    v_lshlrev_b32 v{a0}, 16, v{R1}
    v_and_b32 v{a1}, s{sHI}, v{R1}
    v_lshlrev_b32 v{a2}, 16, v{R2}
    v_mul_f32 v{a0}, v{a0}, v{ri}
    v_mul_f32 v{a1}, v{a1}, v{ri}
    v_mul_f32 v{a2}, v{a2}, v{ri}
    v_cvt_pk_bf16_f32 v{vRXY}, v{a0}, v{a1}
    v_cvt_pk_bf16_f32 v{vRZ}, v{a2}, v{a2}
    s_waitcnt lgkmcnt(0)
    s_barrier
    """)
    A(f"""
    v_bfe_u32 v{tA}, v{vW}, 4, 4
    v_lshlrev_b32 v{tB}, 2, v{tA}
    ds_read_b32 v{tB}, v{tB} offset:{L_CNT}
    v_add_u32 v{tC}, 15, v{tB}
    v_and_b32 v{tC}, -16, v{tC}
    v_mov_b32 v{tD}, v{tC}
    """)
    for m in (1, 2, 4, 8):
        A(f"v_add_u32_dpp v{tD}, v{tD}, v{tD} row_shr:{m} row_mask:0xf bank_mask:0xf")
    A(f"""
    v_sub_u32 v{tD}, v{tD}, v{tC}
    ds_bpermute_b32 v{tC}, v{vGA}, v{tD}
    v_readlane_b32 s{sCNT}, v{tB}, s{sWAVE}
    v_readlane_b32 s{sBLK}, v{tD}, s{sWAVE}
    v_add_u32 v{vRK}, v{vRK}, v{tC}
    v_lshrrev_b32 v{tC}, 4, v{vRK}
    v_mul_u32_u24 v{tC}, {BLKB}, v{tC}
    v_and_b32 v{tD}, 15, v{vRK}
    v_lshl_add_u32 v{a0}, v{tD}, 2, v{tC}
    v_lshl_add_u32 v{a1}, v{tD}, 3, v{tC}
    v_lshrrev_b32 v{tD}, 2, v{tD}
    v_lshl_add_u32 v{a2}, v{tD}, 5, v{tC}
    v_and_b32 v{tD}, 3, v{vRK}
    v_lshl_add_u32 v{a2}, v{tD}, 1, v{a2}
    s_mov_b64 exec, s[{sEX}:{sEX+1}]
    ds_write_b32 v{a0}, v{vSO} offset:{L_DESC}
    ds_write_b64 v{a1}, v[{vP0}:{vP1}] offset:{L_DESC+64}
    ds_write_b16 v{a2}, v{vRXY} offset:{L_DESC+192}
    ds_write_b16_d16_hi v{a2}, v{vRXY} offset:{L_DESC+200}
    ds_write_b16 v{a2}, v{vRZ} offset:{L_DESC+208}
    ds_write_b16 v{a2}, v{vOH} offset:{L_DESC+216}
    s_mov_b64 exec, -1
    s_add_u32 s{sNHT}, s{sCNT}, 15
    s_lshr_b32 s{sNHT}, s{sNHT}, 4
    s_lshr_b32 s{sBLK}, s{sBLK}, 4
    s_mul_i32 s{sBLK}, s{sBLK}, {BLKB}
    s_add_u32 s{sBLK}, s{sBLK}, {L_DESC}
    s_and_b32 s3, s{sCNT}, 15
    s_cbranch_scc0 K2_D1
    s_lshr_b32 s60, s{sCNT}, 4
    s_mul_i32 s60, s60, {BLKB}
    s_add_u32 s60, s60, s{sBLK}
    v_lshl_add_u32 v{a0}, v{tA}, 2, s60
    v_lshl_add_u32 v{a1}, v{tA}, 3, s60
    v_lshrrev_b32 v{tD}, 2, v{tA}
    v_lshl_add_u32 v{a2}, v{tD}, 5, s60
    v_and_b32 v{tD}, 3, v{tA}
    v_lshl_add_u32 v{a2}, v{tD}, 1, v{a2}
    v_mov_b32 v{vSO}, 0x7ffffe00
    v_mov_b32 v{vP0}, 0
    v_mov_b32 v{vP1}, 0
    v_cmp_le_u32 vcc, s3, v{tA}
    s_mov_b64 exec, vcc
    ds_write_b32 v{a0}, v{vSO}
    ds_write_b64 v{a1}, v[{vP0}:{vP1}] offset:64
    ds_write_b16 v{a2}, v{vP0} offset:216
    s_mov_b64 exec, -1
    K2_D1:
    s_waitcnt lgkmcnt(0)
    s_barrier
    s_cmp_eq_u32 s{sFIRST}, 0
    s_cbranch_scc1 K2_MAIN
    """)
    def acc_addr(x):
        A(f"""
        v_bfe_u32 v{x}, v{vW}, 4, 3
        v_mul_u32_u24 v{x}, {ROWP}, v{x}
        v_bfe_u32 v{x+1}, v{vW}, 7, 1
        v_lshl_add_u32 v{x}, v{x+1}, 9, v{x}
        v_lshlrev_b32 v{x+1}, 1, v{x+1}
        v_bfe_u32 v{x+2}, v{vW}, 8, 2
        v_xor_b32 v{x+1}, v{x+1}, v{x+2}
        v_lshl_add_u32 v{x}, v{x+1}, 3, v{x}
        v_add_u32 v{x}, s{sBUF}, v{x}
        """)
    acc_addr(T)
    A("s_waitcnt vmcnt(0)")
    for q in range(16):
        A(f"ds_read_b64 v[{T+4+2*q}:{T+5+2*q}], v{T} offset:{32*q}")
    for q in range(16):
        for hlf in range(2):
            A(f"v_lshlrev_b32 v{4*q+2*hlf}, 16, v{T+4+2*q+hlf}\nv_and_b32 v{4*q+2*hlf+1}, s{sHI}, v{T+4+2*q+hlf}")
    A(f"""
    s_mov_b32 s{sFIRST}, 0
    K2_MAIN:
    s_cmp_eq_u32 s{sNHT}, 0
    s_cbranch_scc1 K2_NEXT
    K2_HT:
    """)
    SO = T + 4; Q = T + 12
    A(f"""
    v_bfe_u32 v{tA}, v{vW}, 9, 1
    v_lshl_add_u32 v{tA}, v{tA}, 5, s{sBLK}
    ds_read_b128 v[{SO}:{SO+3}], v{tA}
    ds_read_b128 v[{SO+4}:{SO+7}], v{tA} offset:16
    v_bfe_u32 v{tB}, v{vW}, 4, 4
    v_lshl_add_u32 v{tB}, v{tB}, 3, s{sBLK}
    v_bfe_u32 v{tC}, v{vW}, 8, 2
    v_lshl_add_u32 v{tC}, v{tC}, 5, s{sBLK}
    ds_read_b128 v[{Q}:{Q+3}], v{tC} offset:192
    ds_read_b128 v[{Q+4}:{Q+7}], v{tC} offset:208
    ds_read_b64 v[{PP}:{PP+1}], v{tB} offset:64
    v_and_b32 v{tD}, 0x1f0, v{vW}
    s_mov_b32 m0, s{sBUF}
    """)
    for i in range(8):
        A(f"v_add_u32 v{SO+i}, v{SO+i}, v{tD}")
        A(f"buffer_load_dwordx4 v{SO+i}, s[{SV}:{SV+3}], 0 offen lds")
        if i < 7: A(f"s_addk_i32 m0, {ROWP}")
    A(f"""
    v_pk_lshlrev_b16 v{Q+6}, v{vSH}, v{Q+6}
    v_pk_lshlrev_b16 v{Q+7}, v{vSH}, v{Q+7}
    v_pk_ashrrev_i16 v{Q+6}, s{sF15}, v{Q+6}
    v_pk_ashrrev_i16 v{Q+7}, s{sF15}, v{Q+7}
    v_and_b32 v{SOP}, 0x3f803f80, v{Q+6}
    v_and_b32 v{SOP+1}, 0x3f803f80, v{Q+7}
    """)
    for c in range(3):
        A(f"v_and_b32 v{SOP+2+2*c}, v{Q+6}, v{Q+2*c}\nv_and_b32 v{SOP+3+2*c}, v{Q+7}, v{Q+2*c+1}")
    D1 = T; WB = T + 16
    for o in range(6):
        A(f"ds_read_b128 v[{WB+4*o}:{WB+4*o+3}], v{vW} offset:{L_W1+1024*o}")
    A(f"""
    s_add_u32 s{sBLK}, s{sBLK}, {BLKB}
    s_sub_u32 s{sNHT}, s{sNHT}, 1
    s_waitcnt vmcnt(0)
    ds_read_b128 v[{H}:{H+3}], v{vS}
    ds_read_b128 v[{H+4}:{H+7}], v{vS} offset:64
    """)
    def mm32(dst, a, b, c):
        A(f"v_mfma_f32_16x16x32_bf16 v[{dst}:{dst+3}], v[{a}:{a+3}], v[{b}:{b+3}], " + ("0" if c is None else f"v[{c}:{c+3}]"))
    def mm16(dst, a, b):
        A(f"v_mfma_f32_16x16x16_bf16 v[{dst}:{dst+3}], v[{a}:{a+1}], v[{b}:{b+1}], v[{dst}:{dst+3}]")
    slot = [WB + 4*o for o in range(6)] + [WB, WB + 4]
    for o in range(8):
        u, t = o >> 1, o & 1
        mm32(D1 + 4*u, slot[o], H + 4*t, None if t == 0 else D1 + 4*u)
        if o < 2:
            A(f"ds_read_b128 v[{slot[6+o]}:{slot[6+o]+3}], v{vW} offset:{L_W1+1024*(6+o)}")
    WF = T; PHI = T + 16; SL = [T + 28, T + 32, T + 36]; WR = T + 40
    E1 = T + 16
    def w2off(ct, ty, t): return L_W2 + 1024 * ((ct * 3 + ty) * 2 + t)
    for u in range(4):
        x = D1 + 4*u; e = E1 + 4*(u & 1)
        if P["PK"]:
            A(f"v_pk_mul_f32 v[{e}:{e+1}], v[{x}:{x+1}], s[{sNL2E}:{sNL2E+1}]")
            A(f"v_pk_mul_f32 v[{e+2}:{e+3}], v[{x+2}:{x+3}], s[{sNL2E}:{sNL2E+1}]")
        else:
            for i in range(4): A(f"v_mul_f32 v{e+i}, s{sNL2E}, v{x+i}")
        for i in range(4): A(f"v_exp_f32 v{e+i}, v{e+i}")
        if P["PK"]:
            A(f"v_pk_add_f32 v[{e}:{e+1}], v[{e}:{e+1}], 1.0 op_sel_hi:[1,0]")
            A(f"v_pk_add_f32 v[{e+2}:{e+3}], v[{e+2}:{e+3}], 1.0 op_sel_hi:[1,0]")
        else:
            for i in range(4): A(f"v_add_f32 v{e+i}, 1.0, v{e+i}")
        for i in range(4): A(f"v_rcp_f32 v{e+i}, v{e+i}")
        mul4(A, e, e, x)
        A(f"v_cvt_pk_bf16_f32 v{H+2*u}, v{e}, v{e+1}\nv_cvt_pk_bf16_f32 v{H+2*u+1}, v{e+2}, v{e+3}")
        if u == 0:
            A(f"v_lshrrev_b32 v{WR}, 1, v{vW}")
            A(f"ds_read_b64 v[{WR}:{WR+1}], v{WR} offset:{L_WR}")
            A(f"ds_read_b128 v[{SL[0]}:{SL[0]+3}], v{vW} offset:{w2off(0,0,0)}")
            A(f"ds_read_b128 v[{SL[1]}:{SL[1]+3}], v{vW} offset:{w2off(0,0,1)}")
            A(f"ds_read_b128 v[{SL[2]}:{SL[2]+3}], v{vW} offset:{w2off(0,1,0)}")
    for ct in range(4):
        s0, s1, s2 = SL
        A(f"v_mfma_f32_16x16x4_4b_bf16 v[{WF}:{WF+15}], v[{PP}:{PP+1}], v[{WR}:{WR+1}], 0")
        mm32(PHI, H, s0, None)
        A(f"ds_read_b128 v[{s0}:{s0+3}], v{vW} offset:{w2off(ct,1,1)}")
        mm32(PHI, H + 4, s1, PHI)
        A(f"ds_read_b128 v[{s1}:{s1+3}], v{vW} offset:{w2off(ct,2,0)}")
        mm32(PHI + 4, H, s2, None)
        A(f"ds_read_b128 v[{s2}:{s2+3}], v{vW} offset:{w2off(ct,2,1)}")
        mm32(PHI + 4, H + 4, s0, PHI + 4)
        A(f"ds_read_b64_tr_b16 v[{s0}:{s0+1}], v{vT} offset:{128+32*ct}")
        A(f"ds_read_b64_tr_b16 v[{s0+2}:{s0+3}], v{vT} offset:{256+32*ct}")
        mm32(PHI + 8, H, s1, None)
        A(f"ds_read_b64_tr_b16 v[{s1}:{s1+1}], v{vT} offset:{384+32*ct}")
        mm32(PHI + 8, H + 4, s2, PHI + 8)
        if ct < 3:
            A(f"ds_read_b128 v[{s2}:{s2+3}], v{vW} offset:{w2off(ct+1,0,0)}")
            A(f"v_lshrrev_b32 v{WR}, 1, v{vW}")
            A(f"ds_read_b64 v[{WR}:{WR+1}], v{WR} offset:{L_WR+512*(ct+1)}")
        mul4(A, PHI, PHI, WF)
        A(f"v_cvt_pk_bf16_f32 v{WF}, v{PHI}, v{PHI+1}\nv_cvt_pk_bf16_f32 v{WF+1}, v{PHI+2}, v{PHI+3}")
        mul4(A, PHI + 4, PHI + 4, WF + 4)
        mm16(4*ct, WF, SOP)
        mul4(A, PHI + 8, PHI + 8, WF + 8)
        A(f"v_cvt_pk_bf16_f32 v{WF+2}, v{PHI+8}, v{PHI+9}\nv_cvt_pk_bf16_f32 v{WF+3}, v{PHI+10}, v{PHI+11}")
        vt = [s0, s0 + 2, s1]
        for c in range(3):
            u = WF + 4 + 4*c
            A(f"""
            v_lshlrev_b32 v{u}, 16, v{vt[c]}
            v_and_b32 v{u+1}, s{sHI}, v{vt[c]}
            v_lshlrev_b32 v{u+2}, 16, v{vt[c]+1}
            v_and_b32 v{u+3}, s{sHI}, v{vt[c]+1}
            """)
            mm16(16*(c+1) + 4*ct, WF + 2, SOP + 2 + 2*c)
            if ct < 3 and c == 1:
                A(f"ds_read_b128 v[{s0}:{s0+3}], v{vW} offset:{w2off(ct+1,0,1)}")
            if ct < 3 and c == 2:
                A(f"ds_read_b128 v[{s1}:{s1+3}], v{vW} offset:{w2off(ct+1,1,0)}")
            mul4(A, u, u, PHI + 4)
            A(f"v_cvt_pk_bf16_f32 v{u}, v{u}, v{u+1}\nv_cvt_pk_bf16_f32 v{u+1}, v{u+2}, v{u+3}")
        for c in range(3):
            mm16(16*(c+1) + 4*ct, WF + 4 + 4*c, SOP)
        SL = [s2, s0, s1]
    A(f"""
    s_cmp_lg_u32 s{sNHT}, 0
    s_cbranch_scc1 K2_HT
    K2_NEXT:
    s_add_u32 s{sBATCH}, s{sBATCH}, {CAP}
    s_cmp_ge_u32 s{sBATCH}, s{sTOT}
    s_cbranch_scc1 K2_EPI
    s_barrier
    v_bfe_u32 v{tA}, v{vW}, 4, 4
    v_lshlrev_b32 v{tA}, 2, v{tA}
    v_mov_b32 v{tB}, 0
    ds_write_b32 v{tA}, v{tB} offset:{L_CNT}
    s_branch K2_BATCH
    K2_NF:
    s_waitcnt vmcnt(0)
    s_branch K2_A2
    K2_EPI:
    """)
    if P.get("TSCALE"):
        import struct
        c = struct.unpack("<I", struct.pack("<f", 1 + P["TSCALE"] / 1000))[0]
        for q in range(64): A(f"v_mul_f32 v{q}, {c:#x}, v{q}")
    if P.get("TADD"):
        import struct
        c = struct.unpack("<I", struct.pack("<f", P["TADD"] / 1000))[0]
        A(f"s_or_b32 s3, s2, s{sWAVE}\ns_cbranch_scc1 K2_TA\ns_mov_b64 exec, 1\nv_add_f32 v3, {c:#x}, v3\ns_mov_b64 exec, -1\nK2_TA:")
    acc_addr(T)
    for q in range(16):
        x = T + 4 + 2*(q & 7)
        A(f"v_cvt_pk_bf16_f32 v{x}, v{4*q}, v{4*q+1}\nv_cvt_pk_bf16_f32 v{x+1}, v{4*q+2}, v{4*q+3}")
        A(f"ds_write_b64 v{T}, v[{x}:{x+1}] offset:{32*q}")
    A(f"v_add_u32 v{T}, s{sBUF}, v{vW}")
    for i in range(8):
        A(f"ds_read_b128 v[{4*i}:{4*i+3}], v{T} offset:{ROWP*i}")
    dst_addr()
    for i in range(8):
        A(f"buffer_store_dwordx4 v[{4*i}:{4*i+3}], v{tD}, s[{OUT}:{OUT+3}], 0 offen offset:{512*i}")
    A("K2_END:\ns_endpgm")
    return A, 128, 64, L_END

def mul4(A, d, a, b):
    if P["PK"]:
        A(f"v_pk_mul_f32 v[{d}:{d+1}], v[{a}:{a+1}], v[{b}:{b+1}]\nv_pk_mul_f32 v[{d+2}:{d+3}], v[{a+2}:{a+3}], v[{b+2}:{b+3}]")
    else:
        for i in range(4): A(f"v_mul_f32 v{d+i}, v{a+i}, v{b+i}")

def emit(path):
    ks = [(NAME1, k1(), (W + 3, K1T)), (NAME2, k2(), (B, 64 * G))]
    out = ["; PaiNN message passing: kernel 1 keeps the edges inside the cutoff and bins them by destination,",
           "; kernel 2 gathers source rows and accumulates the messages per destination node with MFMA.",
           "; Generated by a hand-written generator script."]
    for name, (A, vg, sg, lds), (grid, blk) in ks:
        out.append(f"; @launch kernel={name} grid=({grid},1,1) block=({blk},1,1) lds={lds}")
    out.append('.amdgcn_target "amdgcn-amd-amdhsa--gfx950"\n.text')
    for name, (A, vg, sg, lds), _ in ks:
        body, n = A.finish()
        print(name, "instructions", len(A.ins), "hazard states", n, file=sys.stderr)
        out.append(f".globl {name}\n.p2align 8\n.type {name},@function\n{name}:\n{body}")
    out.append('.section .rodata,"a"')
    for name, (A, vg, sg, lds), _ in ks:
        out.append(f""".p2align 6
.amdhsa_kernel {name}
  .amdhsa_next_free_vgpr {vg}
  .amdhsa_next_free_sgpr {sg}
  .amdhsa_accum_offset {vg}
  .amdhsa_group_segment_fixed_size 0
  .amdhsa_kernarg_size 88
  .amdhsa_user_sgpr_count 2
  .amdhsa_user_sgpr_kernarg_segment_ptr 1
  .amdhsa_system_sgpr_workgroup_id_x 1
  .amdhsa_float_denorm_mode_32 3
.end_amdhsa_kernel""")
    open(path, "w").write("\n".join(out) + "\n")

emit(sys.argv[1])
```

```python
import sys
from asmlib import *

P = dict(NB=196, DSTEARLY=1, PF=0, ORD=0, TPF=1, LATE=1, NOH=0, TEARLY=1, HST=2, OST=2)
for a in sys.argv[2:]:
    k, v = a.split("="); P[k] = int(v)

N = 50000; E = 800000
W = 250; EC = 3200
NB = P["NB"]; B = (N + NB - 1) // NB; G = (NB + 15) // 16
assert B <= 256 and G <= 13
K1T = 832
WS_W = 0; WS_WBYTES = 26624
WS_H = 0x2000000
WS_OFF = 0x10000
WS_REC = 0x60000
RECB = EC * 12
def magic(d, lim):
    for S in range(16, 32):
        M = -(-(1 << S) // d)
        if M < (1 << 24) and M * lim < (1 << 32) and all((x * M) >> S == x // d for x in range(lim)):
            return M, S
    raise RuntimeError
BM, BS = magic(NB, N)

NAME1 = "painn_bin_kernel"; NAME2 = "painn_msg_kernel"

def srd(A, d, lo, hi, size):
    A(f"s_mov_b32 s{d}, {lo}\ns_mov_b32 s{d+1}, {hi}\ns_mov_b32 s{d+2}, {size}\ns_mov_b32 s{d+3}, 0x20000")
def srd_off(A, d, base, off, size):
    A(f"s_add_u32 s{d}, s{base}, {off}\ns_addc_u32 s{d+1}, s{base+1}, 0\ns_mov_b32 s{d+2}, {size}\ns_mov_b32 s{d+3}, 0x20000")

WS_STAMP = 0x1000000
STV = [0]
def stamp(A, k):
    if not P.get("STAMP"): return
    if STV[0]: A(f"s_memrealtime s[96:97]\ns_waitcnt lgkmcnt(0)\nv_writelane_b32 v{STV[0]}, s96, {k}")
    else: A(f"s_memrealtime s[96:97]\ns_waitcnt lgkmcnt(0)\ns_mov_b32 s{64+k}, s96")
def stamp_acc(A, k, j):
    if not P.get("STAMP"): return
    A(f"s_memrealtime s[96:97]\ns_waitcnt lgkmcnt(0)\ns_sub_u32 s97, s96, s{64+j}\ns_add_u32 s{64+k}, s{64+k}, s97\ns_mov_b32 s{64+j}, s96")
def stamp_out(A, wsreg, region, wave_sgpr, v):
    if not P.get("STAMP"): return
    A(f"s_mov_b64 exec, -1\ns_lshl_b32 s96, s2, 4\ns_add_u32 s96, s96, s{wave_sgpr}\ns_lshl_b32 s96, s96, 6\ns_add_u32 s96, s96, {WS_STAMP + region * 0x80000}")
    srd_off(A, 92, wsreg, "s96", 64)
    if STV[0]: A(f"v_mov_b32 v{v}, v{STV[0]}")
    else:
        for k in range(16): A(f"v_writelane_b32 v{v}, s{64+k}, {k}")
    A(f"v_mbcnt_lo_u32_b32 v{v+1}, -1, 0\nv_mbcnt_hi_u32_b32 v{v+1}, -1, v{v+1}\nv_lshlrev_b32 v{v+1}, 2, v{v+1}")
    A(f"buffer_store_dword v{v}, v{v+1}, s[92:95], 0 offen")
def stamp_init(A):
    if not P.get("STAMP"): return
    if STV[0]: A(f"v_mov_b32 v{STV[0]}, 0")
    else:
        for k in range(16): A(f"s_mov_b32 s{64+k}, 0")
    stamp(A, 0)

def wave_scan(A, x):
    for m in ("row_shr:1 row_mask:0xf", "row_shr:2 row_mask:0xf", "row_shr:4 row_mask:0xf", "row_shr:8 row_mask:0xf",
              "row_bcast:15 row_mask:0xa", "row_bcast:31 row_mask:0xc"):
        A(f"v_add_u32_dpp v{x}, v{x}, v{x} {m} bank_mask:0xf")

PS = 75024
L1_W1 = 150272; L1_CNT = L1_W1 + 8192; L1_END = L1_CNT + 2048
def k1():
    A = Asm(); STV[0] = 62
    SRC, DST, POS, REC, OFF, SVR, HO, W1 = 12, 16, 20, 24, 28, 32, 36, 40
    sWAVE, sX5, sVAL = 44, 46, 48
    sM = 50
    sA = 82
    A(f"""
    s_cmp_ge_u32 s2, {W+2}
    s_cbranch_scc1 K1_END
    s_load_dwordx4 s[4:7], s[0:1], 8
    s_load_dwordx2 s[8:9], s[0:1], 24
    s_load_dwordx2 s[10:11], s[0:1], 80
    s_cmp_ge_u32 s2, {W}
    s_cbranch_scc1 K1_PREP
    """)
    stamp_init(A)
    A(f"""
    s_load_dwordx2 s[90:91], s[0:1], 0
    s_load_dwordx2 s[92:93], s[0:1], 40
    v_lshrrev_b32 v1, 6, v0
    v_and_b32 v2, 63, v0
    v_readfirstlane_b32 s{sWAVE}, v1
    v_lshlrev_b32 v1, 4, v0
    v_lshlrev_b32 v3, 4, v2                    ; lane*16
    v_and_b32 v4, 255, v0
    v_lshlrev_b32 v4, 2, v4
    v_add_u32 v4, {L1_CNT}, v4
    v_mov_b32 v5, 0
    ds_write_b32 v4, v5
    v_cmp_gt_u32 s[{sVAL}:{sVAL+1}], {EC//4}, v0
    s_mul_i32 s3, s2, {EC*4}
    s_waitcnt lgkmcnt(0)
    """.replace(f"v_cmp_gt_u32 s[{sVAL}:{sVAL+1}], {EC//4}, v0", f"v_cmp_gt_u32 vcc, {EC//4}, v0\n    s_mov_b64 s[{sVAL}:{sVAL+1}], vcc"))
    srd_off(A, SRC, 6, "s3", EC*4)
    srd_off(A, DST, 8, "s3", EC*4)
    A(f"buffer_load_dwordx4 v[4:7], v1, s[{SRC}:{SRC+3}], 0 offen")
    A(f"buffer_load_dwordx4 v[8:11], v1, s[{DST}:{DST+3}], 0 offen")
    srd(A, POS, "s4", "s5", N*6)
    if P["TPF"]:
        A(f"""
        s_lshr_b32 s3, s2, 3
        s_min_u32 s3, s3, 30
        s_mul_i32 s3, s3, {76*128}
        v_lshlrev_b32 v46, 6, v0
        v_cmp_gt_u32 vcc, {76*2}, v0
        s_mov_b64 exec, vcc
        buffer_load_dword v63, v46, s[{POS}:{POS+3}], s3 offen
        ;@ready v63
        s_mov_b64 exec, -1
        """)
    A(f"""
    s_mul_i32 s3, s2, {N//W}
    s_lshl_b32 s45, s{sWAVE}, 4
    s_add_u32 s3, s3, s45
    s_lshl_b32 s3, s3, 9
    s_sub_u32 s45, {N//W}, s45
    s_min_u32 s45, s45, 16
    s_lshl_b32 s45, s45, 9
    """)
    srd_off(A, SVR, 90, "s3", "s45")
    A(f"s_add_u32 s3, s3, {WS_H}")
    srd_off(A, HO, 10, "s3", "s45")
    srd(A, W1, "s92", "s93", 8192)
    vHA = 44; SB = 48
    A(f"""
    v_and_b32 v{vHA}, 15, v2
    v_lshlrev_b32 v{vHA}, 9, v{vHA}
    v_and_b32 v45, 0x30, v2
    v_add_u32 v{vHA}, v{vHA}, v45
    """)
    if P["NOH"] & 1: A("v_mov_b32 v56, 0x7ffffff0\nv_mov_b32 v57, v56")
    else: A(f"v_mov_b32 v56, v{vHA}")
    if P["NOH"] & 2: A(f"v_mov_b32 v{vHA}, 0x7ffffff0")
    A(f"""
    buffer_load_dwordx4 v[{SB}:{SB+3}], v56, s[{SVR}:{SVR+3}], 0 offen
    buffer_load_dwordx4 v[{SB+4}:{SB+7}], v56, s[{SVR}:{SVR+3}], 0 offen offset:64
    v_bfe_u32 v45, v2, 4, 1
    s_and_b32 s3, s{sWAVE}, 1
    s_lshl_b32 s3, s3, 1
    v_or_b32 v45, s3, v45
    v_lshlrev_b32 v45, 5, v45
    v_xor_b32 v45, v45, v3
    s_cmp_lt_u32 s{sWAVE}, 8
    s_cselect_b64 exec, -1, 0
    s_cselect_b64 s[{sX5}:{sX5+1}], -1, 1
    s_lshl_b32 s3, s{sWAVE}, 10
    s_add_u32 m0, s3, {L1_W1}
    buffer_load_dwordx4 v45, s[{W1}:{W1+3}], s3 offen lds
    s_cmp_eq_u32 s{sWAVE}, 8
    s_cselect_b32 s{sX5}, 0x1ffff, s{sX5}
    s_cmp_le_u32 s{sWAVE}, 8
    s_cselect_b32 s45, {13*1024}, 0
    s_mov_b64 exec, -1
    """)
    def piece(p):
        A(f"s_lshl_b32 s3, s{sWAVE}, 10\ns_add_u32 m0, s3, {(p&1)*PS}\ns_add_u32 s3, s3, {p*PS}")
        for r in range(6):
            if r == 5: A(f"s_mov_b64 exec, s[{sX5}:{sX5+1}]")
            A(f"buffer_load_dwordx4 v3, s[{POS}:{POS+3}], s3 offen lds")
            if r < 4: A(f"s_add_u32 m0, m0, {13*1024}\ns_add_u32 s3, s3, {13*1024}")
            if r == 4: A(f"s_add_u32 m0, m0, s45\ns_add_u32 s3, s3, s45")
        A("s_mov_b64 exec, -1")
    def lookup(p):
        for j in range(8):
            hi, od = f"s[{sM+4*j}:{sM+4*j+1}]", f"s[{sM+4*j+2}:{sM+4*j+3}]"
            A([f"s_nor_b64 exec, {hi}, {od}", f"s_andn2_b64 exec, {od}, {hi}", f"s_andn2_b64 exec, {hi}, {od}", f"s_and_b64 exec, {hi}, {od}"][p])
            A(f"ds_read2_b32 v[{12+2*j}:{13+2*j}], v{28+j} offset1:1")
            A(f";@ready v[{12+2*j}:{13+2*j}]")
        A("s_mov_b64 exec, -1")
    if P["TEARLY"]: piece(0); piece(1)
    if P["PF"]:
        A(f"""
        v_lshrrev_b32 v46, 2, v2
        v_lshlrev_b32 v46, 9, v46
        v_and_b32 v47, 3, v2
        v_lshl_add_u32 v46, v47, 7, v46
        """)
    A(f"s_mul_i32 s3, s2, {RECB}\ns_add_u32 s3, s3, {WS_REC}")
    srd_off(A, REC, 10, "s3", RECB)
    A(f"s_lshl_b32 s3, s2, 10\ns_add_u32 s3, s3, {WS_OFF}")
    srd_off(A, OFF, 10, "s3", B*4)
    A(f"s_waitcnt vmcnt({14 if P['TEARLY'] else 2})\n;@ready v[4:11]")
    stamp(A, 1)
    if not P["TEARLY"]: piece(0); piece(1)
    for j in range(8):
        A(f"""
        v_mul_u32_u24 v{28+j}, 6, v{4+j}
        v_cmp_lt_u32 vcc, {2*PS//6-1}, v{4+j}
        v_and_b32 v{28+j}, -4, v{28+j}
        v_subrev_u32 v36, {2*PS}, v{28+j}
        s_mov_b64 s[{sM+4*j}:{sM+4*j+1}], vcc
        v_min_u32 v{28+j}, v{28+j}, v36
        v_cmp_lt_u32 vcc, {PS-1}, v{28+j}
        s_mov_b64 s[{sM+4*j+2}:{sM+4*j+3}], vcc
        """)
    A(f"s_waitcnt vmcnt(6)\ns_barrier")
    stamp(A, 2)
    lookup(0)
    A("s_waitcnt lgkmcnt(0)\ns_barrier")
    piece(2)
    if P["PF"]:
        A(f"buffer_load_dword v63, v46, s[{SVR}:{SVR+3}], 0 offen\n;@ready v63")
        if P["PF"] > 1: A(f"buffer_load_dword v63, v46, s[{SVR}:{SVR+3}], 0 offen offset:64\n;@ready v63")
    WA = 64; D1 = 96; E1 = 112
    A(f"""
    v_lshrrev_b32 v56, 4, v2
    v_bfe_u32 v57, v2, 2, 2
    v_lshl_add_u32 v58, v56, 3, v57            ; row 8g+r
    v_lshlrev_b32 v58, 7, v58
    v_and_b32 v59, 3, v2
    v_lshl_add_u32 v58, v59, 3, v58
    v_lshrrev_b32 v57, 1, v57
    v_and_b32 v56, 1, v56
    v_lshl_or_b32 v57, v56, 1, v57
    v_lshlrev_b32 v57, 5, v57
    v_xor_b32 v58, v58, v57
    v_add_u32 v58, {L1_W1}, v58
    """)
    for u in range(4):
        if u: A(f"v_xor_b32 v{58+u}, {32*u}, v58")
    for u in range(4):
        for t in range(2):
            for hf in range(2):
                x = WA + 8*u + 4*t + 2*hf
                A(f"ds_read_b64_tr_b16 v[{x}:{x+1}], v{58+u} offset:{4096*t+512*hf}")
    for u in range(4):
        for t in range(2):
            x = WA + 8*u + 4*t
            A(f"v_mfma_f32_16x16x32_bf16 v[{D1+4*u}:{D1+4*u+3}], v[{x}:{x+3}], v[{SB+4*t}:{SB+4*t+3}], " + ("0" if t == 0 else f"v[{D1+4*u}:{D1+4*u+3}]"))
    for u in range(4):
        x = D1 + 4*u; e = E1 + 4*u
        A(f"v_cvt_pk_bf16_f32 v{x+1}, v{x}, v{x+1}\nv_cvt_pk_bf16_f32 v{x+3}, v{x+2}, v{x+3}")
        A(f"v_lshlrev_b32 v{x}, 16, v{x+1}\nv_and_b32 v{x+1}, 0xffff0000, v{x+1}\nv_lshlrev_b32 v{x+2}, 16, v{x+3}\nv_and_b32 v{x+3}, 0xffff0000, v{x+3}")
        for i in range(4): A(f"v_mul_f32 v{e+i}, 0xbfb8aa3b, v{x+i}")
        for i in range(4): A(f"v_exp_f32 v{e+i}, v{e+i}")
        for i in range(4): A(f"v_add_f32 v{e+i}, 1.0, v{e+i}")
        for i in range(4): A(f"v_rcp_f32 v{e+i}, v{e+i}")
        for i in range(4): A(f"v_mul_f32 v{e+i}, v{e+i}, v{x+i}")
        A(f"v_cvt_pk_bf16_f32 v{SB+2*u}, v{e}, v{e+1}\nv_cvt_pk_bf16_f32 v{SB+2*u+1}, v{e+2}, v{e+3}")
    hst = ["", " nt", " sc1", " sc0 sc1"][P["HST"]]
    A(f"buffer_store_dwordx4 v[{SB}:{SB+3}], v{vHA}, s[{HO}:{HO+3}], 0 offen{hst}")
    A(f"buffer_store_dwordx4 v[{SB+4}:{SB+7}], v{vHA}, s[{HO}:{HO+3}], 0 offen offset:64{hst}")
    stamp(A, 3)
    A(f"s_waitcnt vmcnt({8+P['PF']})\ns_barrier")
    stamp(A, 8)
    lookup(1)
    A("s_waitcnt lgkmcnt(0)\ns_barrier")
    piece(3)
    A("s_waitcnt vmcnt(6)\ns_barrier")
    stamp(A, 9)
    lookup(2)
    A("s_waitcnt vmcnt(0)\ns_barrier")
    stamp(A, 4)
    lookup(3)
    A("v_mov_b32 v63, 1\ns_waitcnt lgkmcnt(0)")
    thr = 0x41c9999a
    for j in range(4):
        s, d, ps, pd = 4+j, 8+j, 12+2*j, 20+2*j
        r0, r1, r2, rk = 36+4*j, 37+4*j, 38+4*j, 39+4*j
        t = 52
        A(f"""
        v_lshlrev_b32 v{t}, 4, v{s}
        v_lshlrev_b32 v{t+1}, 4, v{d}
        v_alignbit_b32 v{ps}, v{ps+1}, v{ps}, v{t}
        v_alignbit_b32 v{pd}, v{pd+1}, v{pd}, v{t+1}
        v_lshrrev_b32 v{ps+1}, v{t}, v{ps+1}
        v_lshrrev_b32 v{pd+1}, v{t+1}, v{pd+1}
        v_lshlrev_b32 v{t}, 16, v{ps}
        v_lshlrev_b32 v{t+1}, 16, v{pd}
        v_and_b32 v{ps}, 0xffff0000, v{ps}
        v_and_b32 v{pd}, 0xffff0000, v{pd}
        v_lshlrev_b32 v{ps+1}, 16, v{ps+1}
        v_lshlrev_b32 v{pd+1}, 16, v{pd+1}
        v_sub_f32 v{t}, v{t}, v{t+1}
        v_sub_f32 v{t+1}, v{ps}, v{pd}
        v_sub_f32 v{t+2}, v{ps+1}, v{pd+1}
        v_mul_f32 v{t+3}, v{t}, v{t}
        v_mul_u32_u24 v{28+j}, {BM}, v{d}
        v_fmac_f32 v{t+3}, v{t+1}, v{t+1}
        v_lshrrev_b32 v{28+j}, {BS-2}, v{28+j}
        v_fmac_f32 v{t+3}, v{t+2}, v{t+2}
        v_and_b32 v{28+j}, -4, v{28+j}
        v_subrev_u32 v{t+3}, {thr:#x}, v{t+3}
        v_add_u32 v{28+j}, {L1_CNT}, v{28+j}
        v_cmp_le_u32 vcc, {0x7f800000-thr:#x}, v{t+3}
        v_lshl_or_b32 v{r0}, v{d}, 16, v{s}
        v_cvt_pk_bf16_f32 v{r1}, v{t}, v{t+1}
        v_cvt_pk_bf16_f32 v{r2}, v{t+2}, v{t+2}
        s_and_b64 s[{sA+2*j}:{sA+2*j+1}], vcc, s[{sVAL}:{sVAL+1}]
        s_mov_b64 exec, s[{sA+2*j}:{sA+2*j+1}]
        ds_add_rtn_u32 v{rk}, v{28+j}, v63
        s_mov_b64 exec, -1
        """)
    stamp(A, 5)
    A("s_waitcnt lgkmcnt(0)\ns_barrier")
    A(f"""
    v_add_u32 v1, {L1_CNT}, v3
    ds_read_b128 v[4:7], v1
    v_add_u32 v9, v4, v5
    v_add_u32 v10, v9, v6
    v_add_u32 v11, v10, v7
    v_mov_b32 v12, v11
    """)
    wave_scan(A, 12)
    A(f"""
    v_sub_u32 v12, v12, v11
    v_add_u32 v13, v12, v4
    v_add_u32 v14, v12, v9
    v_add_u32 v15, v12, v10
    ds_write_b128 v1, v[12:15] offset:1024
    """)
    for j in range(4):
        A(f"ds_read_b32 v{16+j}, v{28+j} offset:1024")
    A(f"""
    s_cmp_lg_u32 s{sWAVE}, 0
    s_cbranch_scc1 K1_NOOFF
    v_lshl_or_b32 v4, v4, 16, v12
    v_lshl_or_b32 v5, v5, 16, v13
    v_lshl_or_b32 v6, v6, 16, v14
    v_lshl_or_b32 v7, v7, 16, v15
    buffer_store_dwordx4 v[4:7], v3, s[{OFF}:{OFF+3}], 0 offen
    K1_NOOFF:
    """)
    for j in range(4):
        r0 = 36+4*j
        A(f"""
        v_add_u32 v{16+j}, v{16+j}, v{r0+3}
        v_mul_u32_u24 v{16+j}, 12, v{16+j}
        s_mov_b64 exec, s[{sA+2*j}:{sA+2*j+1}]
        buffer_store_dwordx3 v[{r0}:{r0+2}], v{16+j}, s[{REC}:{REC+3}], 0 offen
        s_mov_b64 exec, -1
        """)
    stamp(A, 6)
    if P.get("STAMP"):
        A("s_waitcnt vmcnt(0)")
        stamp(A, 7)
        stamp_out(A, 10, 0, sWAVE, 4)
    A("s_endpgm")
    A(f"""
    K1_PREP:
    s_load_dwordx4 s[12:15], s[0:1], 48
    v_lshrrev_b32 v1, 6, v0
    v_readfirstlane_b32 s3, v1
    v_bfe_u32 v1, v0, 2, 2
    v_and_b32 v2, 3, v0
    v_lshlrev_b32 v2, 1, v2
    v_lshl_add_u32 v1, v1, 4, v2
    v_bfe_u32 v2, v0, 4, 2
    v_and_b32 v3, 63, v0
    s_waitcnt lgkmcnt(0)
    """)
    srd(A, 24, "s12", "s13", 64*192*2)
    srd(A, 28, "s14", "s15", 4*192*2)
    srd_off(A, 32, 10, WS_W, WS_WBYTES)
    A(f"""
    s_sub_u32 s40, s2, {W}
    s_cmp_ge_u32 s3, 12
    s_cbranch_scc1 K1_PWR
    s_mul_i32 s36, s40, 12
    s_add_u32 s3, s3, s36
    s_and_b32 s36, s3, 1
    s_lshr_b32 s37, s3, 1
    s_mul_i32 s38, s37, 43
    s_lshr_b32 s38, s38, 7
    s_mul_i32 s39, s38, 3
    s_sub_u32 s39, s37, s39
    s_mul_i32 s36, s36, {32*384}
    s_lshl_b32 s39, s39, 7
    s_add_u32 s36, s36, s39
    s_lshr_b32 s39, s38, 1
    s_lshl_b32 s39, s39, 6
    s_add_u32 s36, s36, s39
    s_and_b32 s39, s38, 1
    s_lshl_b32 s39, s39, 3
    s_add_u32 s36, s36, s39
    v_mul_u32_u24 v4, {4*384}, v2
    v_add_u32 v4, v4, v1
    v_add_u32 v5, {16*384}, v4
    """)
    for j in range(8):
        A(f"buffer_load_ushort v{8+j}, v{4+(j>>2)}, s[24:27], s36 offen offset:{384*(j&3)}")
    A(f"""
    s_lshl_b32 s36, s3, 10
    v_lshlrev_b32 v3, 4, v3
    v_lshl_or_b32 v8, v9, 16, v8
    v_lshl_or_b32 v9, v11, 16, v10
    v_lshl_or_b32 v10, v13, 16, v12
    v_lshl_or_b32 v11, v15, 16, v14
    buffer_store_dwordx4 v[8:11], v3, s[32:35], s36 offen
    s_endpgm
    K1_PWR:
    s_lshl_b32 s36, s40, 6
    v_min_u32 v2, 2, v2
    v_lshl_add_u32 v4, v2, 7, v1
    """)
    for c in range(2):
        for j in range(4):
            A(f"buffer_load_ushort v{8+4*c+j}, v4, s[28:31], s36 offen offset:{384*j+8*c}")
    A(f"""
    s_lshl_b32 s36, s40, 10
    s_add_u32 s36, s36, 24576
    v_lshlrev_b32 v3, 3, v3
    v_lshl_or_b32 v8, v9, 16, v8
    v_lshl_or_b32 v9, v11, 16, v10
    v_lshl_or_b32 v10, v13, 16, v12
    v_lshl_or_b32 v11, v15, 16, v14
    buffer_store_dwordx2 v[8:9], v3, s[32:35], s36 offen
    buffer_store_dwordx2 v[10:11], v3, s[32:35], s36 offen offset:512
    K1_END:
    s_endpgm
    """)
    return A, 128, 100, L1_END

L_W2 = 0; L_WR = 24576
L_DESC = 26624; NBLK = 64; BLKB = 320
L_CNT = L_DESC + NBLK * BLKB
L_BUF = (L_CNT + 256 + 255) // 256 * 256
ROWP = 1056; BUFB = 8 * ROWP
L_END = L_BUF + G * BUFB
CAP = min(NBLK * 16 - G * 15, G * 64) // 4 * 4
assert L_END <= 163840 and 2 * G * 1024 == WS_WBYTES

def k2():
    A = Asm(); STV[0] = 0
    SV, DR, OUT, OFF, REC, WW, HT_ = 20, 24, 28, 32, 36, 40, 80
    sWAVE, sBUF, sTOT, sBATCH, sWBASE, sCNT, sBLK, sNHT = 44, 45, 46, 47, 48, 49, 50, 51
    sHI, sF15, sMH, sNODE0, sFIRST = 52, 53, 54, 56, 57
    sEX = 58
    sMV = 62
    sFREQ = 14
    vW, vS, vSH = 64, 65, 66
    H = 68; SOP = 76; PP = 86; ID = 88; T = 90
    A(f"""
    s_cmp_ge_u32 s2, {B}
    s_cbranch_scc1 K2_END
    """)
    stamp_init(A)
    tA, tB, tC, tD = T, T+1, T+2, T+3
    vO = T + 4
    A(f"""
    s_load_dwordx2 s[8:9], s[0:1], 80
    s_load_dwordx2 s[4:5], s[0:1], 0
    s_load_dwordx2 s[6:7], s[0:1], 64
    s_load_dwordx2 s[10:11], s[0:1], 32
    v_lshrrev_b32 v1, 6, v0
    v_and_b32 v2, 63, v0
    v_readfirstlane_b32 s{sWAVE}, v1
    v_lshlrev_b32 v{vW}, 4, v2
    v_mov_b32 v3, 0
    v_lshlrev_b32 v4, 2, v2
    ds_write_b32 v4, v3 offset:{L_CNT}
    s_mul_i32 s{sBUF}, s{sWAVE}, {BUFB}
    s_add_u32 s{sBUF}, s{sBUF}, {L_BUF}
    s_mul_i32 s{sNODE0}, s2, {NB}
    s_mov_b32 s{sBATCH}, 0
    s_mov_b32 s{sFIRST}, 1
    s_mov_b32 s{sHI}, 0xffff0000
    s_mov_b32 s{sF15}, 0x000f000f
    s_mov_b32 s{sMH}, 0xff
    s_mov_b32 s{sMH+1}, 0xff
    s_not_b64 s[{sMV}:{sMV+1}], s[{sMH}:{sMH+1}]
    s_waitcnt lgkmcnt(0)
    s_load_dwordx2 s[12:13], s[10:11], 0
    """)
    srd_off(A, OFF, 8, WS_OFF, W * 1024)
    def offs_load():
        A(f"""
        s_lshl_b32 s3, s{sWAVE}, 16
        s_lshl_b32 s60, s2, 2
        s_add_u32 s3, s3, s60
        v_lshlrev_b32 v{tA}, 6, v{vW}
        buffer_load_dword v{vO}, v{tA}, s[{OFF}:{OFF+3}], s3 offen
        """)
    offs_load()
    A("s_barrier")
    srd_off(A, WW, 8, WS_W, WS_WBYTES)
    for r in range(2):
        A(f"s_add_u32 s3, s{sWAVE}, {r*G}\ns_lshl_b32 s3, s3, 10\ns_mov_b32 m0, s3")
        A(f"buffer_load_dwordx4 v{vW}, s[{WW}:{WW+3}], s3 offen lds")
    A(f"""
    s_lshl_b32 s3, s{sWAVE}, 4
    s_add_u32 s3, s3, s{sNODE0}
    s_add_u32 s60, s{sNODE0}, {NB}
    s_min_u32 s60, s60, {N}
    s_sub_i32 s60, s60, s3
    s_max_i32 s60, s60, 0
    s_min_i32 s60, s60, 16
    s_lshl_b32 s60, s60, 9
    s_lshl_b32 s3, s3, 9
    """)
    srd_off(A, DR, 4, "s3", "s60")
    srd_off(A, OUT, 6, "s3", "s60")
    def dst_dma(lo, hi):
        for i in range(lo, hi):
            A(f"s_add_u32 m0, s{sBUF}, {i*(ROWP-512)}")
            A(f"buffer_load_dwordx4 v{tD}, s[{DR}:{DR+3}], 0 offen offset:{i*512} lds")
    def dst_addr():
        A(f"""
        v_lshrrev_b32 v{tC}, 9, v{vW}
        v_and_b32 v{tD}, 0x1f0, v{vW}
        v_lshl_add_u32 v{tD}, v{tC}, 12, v{tD}
        """)
    dst_addr(); dst_dma(0, P["DSTEARLY"])
    srd_off(A, REC, 8, WS_REC, W * RECB)
    srd_off(A, HT_, 8, WS_H, N * 512)
    srd(A, SV, "s4", "s5", N * 512)
    A(f"""
    v_and_b32 v5, 15, v2
    v_sub_u32 v{vSH}, 15, v5
    v_mul_u32_u24 v{vSH}, 0x10001, v{vSH}
    v_lshrrev_b32 v6, 4, v2
    v_and_b32 v7, 7, v2
    v_mul_u32_u24 v7, {ROWP}, v7
    v_bfe_u32 v8, v2, 3, 1
    v_lshl_add_u32 v7, v8, 9, v7
    v_lshl_add_u32 v7, v6, 4, v7
    v_add_u32 v{vS}, s{sBUF}, v7
    v_lshlrev_b32 v6, 2, v6
    v_sub_u32 v5, v5, v6
    v_mov_b32 v7, 0x3f80
    v_mov_b32 v8, 0x3f800000
    v_cmp_eq_u32 vcc, 0, v5
    v_cndmask_b32 v{ID}, 0, v7, vcc
    v_cmp_eq_u32 vcc, 1, v5
    v_cndmask_b32 v{ID}, v{ID}, v8, vcc
    v_cmp_eq_u32 vcc, 2, v5
    v_cndmask_b32 v{ID+1}, 0, v7, vcc
    v_cmp_eq_u32 vcc, 3, v5
    v_cndmask_b32 v{ID+1}, v{ID+1}, v8, vcc
    s_waitcnt lgkmcnt(0)
    s_lshl_b32 s{sFREQ}, s12, 16
    s_and_b32 s{sFREQ+1}, s12, s{sHI}
    s_lshl_b32 s{sFREQ+2}, s13, 16
    s_and_b32 s{sFREQ+3}, s13, s{sHI}
    s_cmp_ge_u32 s{sWAVE}, 4
    s_cbranch_scc1 K2_B1
    s_waitcnt vmcnt({2+P["DSTEARLY"]})
    K2_A2:
    """)
    stamp(A, 1)
    vC, vSt, vB, vI, vE = T+5, T+6, T+7, T+8, T+9
    A(f"""
    v_lshrrev_b32 v{vC}, 16, v{vO}
    v_and_b32 v{vSt}, 0xffff, v{vO}
    v_mov_b32 v{vB}, v{vC}
    """)
    wave_scan(A, vB)
    A(f"""
    s_cmp_eq_u32 s{sFIRST}, 0
    s_cbranch_scc1 K2_B0
    v_readlane_b32 s3, v{vB}, 63
    v_mov_b32 v{tA}, {L_CNT+64}
    v_mov_b32 v{tB}, s3
    s_mov_b64 exec, 1
    ds_add_rtn_u32 v{tB}, v{tA}, v{tB}
    s_mov_b64 exec, -1
    v_readfirstlane_b32 s{sWBASE}, v{tB}
    K2_B0:
    v_sub_u32 v{vB}, v{vB}, v{vC}
    s_sub_u32 s3, s{sWBASE}, s{sBATCH}
    v_add_u32 v{vB}, s3, v{vB}
    v_sub_u32 v{vI}, 0, v{vB}
    v_max_i32 v{vI}, 0, v{vI}
    v_sub_u32 v{vE}, {CAP}, v{vB}
    v_min_i32 v{vE}, v{vE}, v{vC}
    v_lshrrev_b32 v{tA}, 4, v{vW}
    s_lshl_b32 s3, s{sWAVE}, 6
    v_add_u32 v{tA}, s3, v{tA}
    v_mul_u32_u24 v{tA}, {EC}, v{tA}
    v_add3_u32 v{tA}, v{tA}, v{vSt}, v{vI}
    v_mul_u32_u24 v{tA}, 12, v{tA}
    v_add_u32 v{vB}, v{vB}, v{vI}
    v_lshlrev_b32 v{vB}, 2, v{vB}
    v_sub_u32 v{vE}, v{vE}, v{vI}
    K2_BL:
    v_cmp_lt_i32 vcc, 0, v{vE}
    s_and_b64 exec, exec, vcc
    s_cbranch_execz K2_BX
    ds_write_b32 v{vB}, v{tA} offset:{L_DESC}
    v_add_u32 v{vE}, -1, v{vE}
    v_add_u32 v{vB}, 4, v{vB}
    v_add_u32 v{tA}, 12, v{tA}
    s_branch K2_BL
    K2_BX:
    s_mov_b64 exec, -1
    K2_B1:
    s_waitcnt lgkmcnt(0)
    s_barrier
    """)
    stamp(A, 2)
    R0, R1, R2 = T+4, T+5, T+6
    vSO, vP0, vP1, vRXY, vRZ, vOH, vGA, vRK = T+8, T+10, T+11, T+12, T+13, T+14, T+15, T+16
    d, ri, fc, a0, a1, a2, a3, rx, ry, rz = T+18, T+19, T+20, T+21, T+22, T+23, T+24, T+25, T+26, T+27
    A(f"""
    v_mov_b32 v{tA}, {L_CNT+64}
    ds_read_b32 v{tA}, v{tA}
    v_lshrrev_b32 v{tB}, 2, v{vW}
    s_lshl_b32 s3, s{sWAVE}, 8
    v_add_u32 v{tB}, s3, v{tB}                 ; tid*4
    ds_read_b32 v{tC}, v{tB} offset:{L_DESC}
    v_readfirstlane_b32 s{sTOT}, v{tA}
    s_sub_u32 s3, s{sTOT}, s{sBATCH}
    s_min_u32 s3, s3, {CAP}
    s_lshl_b32 s3, s3, 2
    v_cmp_gt_u32 vcc, s3, v{tB}
    s_mov_b64 s[{sEX}:{sEX+1}], vcc
    s_mov_b64 exec, vcc
    buffer_load_dwordx3 v[{R0}:{R2}], v{tC}, s[{REC}:{REC+3}], 0 offen
    s_mov_b64 exec, -1
    """)
    if P["DSTEARLY"] < 8 and P["LATE"] == 0:
        A(f"s_cmp_eq_u32 s{sFIRST}, 0\ns_cbranch_scc1 K2_C1")
        dst_addr(); dst_dma(P["DSTEARLY"], 8)
        A(f"s_waitcnt vmcnt({8-P['DSTEARLY']})\n;@ready v[{R0}:{R2}]")
        A("K2_C1:")
    def rnd(x):
        A(f"v_cvt_pk_bf16_f32 v{x}, v{x}, v{x}\nv_and_b32 v{x}, 0xffff0000, v{x}")
    def rnd2(x, y):
        A(f"v_cvt_pk_bf16_f32 v{y}, v{x}, v{y}\nv_lshlrev_b32 v{x}, 16, v{y}\nv_and_b32 v{y}, 0xffff0000, v{y}")
    A(f"""
    v_lshrrev_b32 v{vGA}, 16, v{R0}
    v_subrev_u32 v{vGA}, s{sNODE0}, v{vGA}
    v_and_b32 v{vOH}, 15, v{vGA}
    v_lshrrev_b32 v{vGA}, 4, v{vGA}
    v_lshlrev_b32 v{vGA}, 2, v{vGA}
    v_mov_b32 v{vRK}, 1
    s_mov_b64 exec, s[{sEX}:{sEX+1}]
    ds_add_rtn_u32 v{vRK}, v{vGA}, v{vRK} offset:{L_CNT}
    s_mov_b64 exec, -1
    v_lshlrev_b32_e64 v{vOH}, v{vOH}, 1
    v_and_b32 v{vSO}, 0xffff, v{R0}
    v_lshlrev_b32 v{vSO}, 9, v{vSO}
    v_lshlrev_b32 v{rx}, 16, v{R1}
    v_and_b32 v{ry}, 0xffff0000, v{R1}
    v_and_b32 v{rz}, 0xffff0000, v{R2}
    v_mul_f32 v{a0}, v{rx}, v{rx}
    v_mul_f32 v{a1}, v{ry}, v{ry}
    v_mul_f32 v{d}, v{rz}, v{rz}
    """)
    stamp(A, 3)
    if P["DSTEARLY"] < 8 and P["LATE"] == 1:
        A(f"s_cmp_eq_u32 s{sFIRST}, 0\ns_cbranch_scc1 K2_C1")
        dst_addr(); dst_dma(P["DSTEARLY"], 8)
        A("K2_C1:")
    rnd2(a0, a1); rnd(d)
    A(f"v_add_f32 v{a0}, v{a0}, v{a1}\nv_add_f32 v{d}, v{a0}, v{d}")
    rnd(d)
    A(f"v_add_f32 v{d}, 0x322bcc77, v{d}")
    rnd(d)
    A(f"v_sqrt_f32 v{d}, v{d}")
    rnd(d)
    A(f"""
    v_rcp_f32 v{ri}, v{d}
    v_mul_f32 v{fc}, 0x40490fdb, v{d}
    v_mul_f32 v{a0}, s{sFREQ}, v{d}
    v_mul_f32 v{a1}, s{sFREQ+1}, v{d}
    v_mul_f32 v{a2}, s{sFREQ+2}, v{d}
    v_mul_f32 v{a3}, s{sFREQ+3}, v{d}
    v_cmp_gt_f32 vcc, 0x40a00000, v{d}
    v_mul_f32 v{d}, 0, v{d}
    """)
    rnd(fc); rnd2(a0, a1); rnd2(a2, a3)
    A(f"v_mul_f32 v{fc}, 0x3e4ccccd, v{fc}")
    rnd(fc)
    for x in (fc, a0, a1, a2, a3):
        A(f"v_mul_f32 v{x}, 0.15915494, v{x}")
    for x in (a0, a1, a2, a3):
        A(f"v_fract_f32 v{x}, v{x}")
    A(f"v_cos_f32 v{fc}, v{fc}")
    for x in (a0, a1, a2, a3):
        A(f"v_sin_f32 v{x}, v{x}")
    rnd(fc); rnd2(a0, a1); rnd2(a2, a3)
    A(f"v_add_f32 v{fc}, 1.0, v{fc}")
    for x in (a0, a1, a2, a3):
        A(f"v_mul_f32 v{x}, v{x}, v{ri}")
    rnd(fc); rnd2(a0, a1); rnd2(a2, a3)
    A(f"v_mul_f32 v{fc}, 0.5, v{fc}\nv_cndmask_b32 v{fc}, v{d}, v{fc}, vcc")
    for x in (rx, ry, rz):
        A(f"v_mul_f32 v{x}, v{x}, v{ri}")
    for x in (a0, a1, a2, a3):
        A(f"v_mul_f32 v{x}, v{x}, v{fc}")
    A(f"""
    v_cvt_pk_bf16_f32 v{vRXY}, v{rx}, v{ry}
    v_cvt_pk_bf16_f32 v{vRZ}, v{rz}, v{rz}
    v_cvt_pk_bf16_f32 v{vP0}, v{a0}, v{a1}
    v_cvt_pk_bf16_f32 v{vP1}, v{a2}, v{a3}
    s_waitcnt lgkmcnt(0)
    s_barrier
    """)
    stamp(A, 4)
    A(f"""
    v_bfe_u32 v{tA}, v{vW}, 4, 4
    v_lshlrev_b32 v{tB}, 2, v{tA}
    ds_read_b32 v{tB}, v{tB} offset:{L_CNT}
    v_add_u32 v{tC}, 15, v{tB}
    v_and_b32 v{tC}, -16, v{tC}
    v_mov_b32 v{tD}, v{tC}
    """)
    for m in (1, 2, 4, 8):
        A(f"v_add_u32_dpp v{tD}, v{tD}, v{tD} row_shr:{m} row_mask:0xf bank_mask:0xf")
    A(f"""
    v_sub_u32 v{tD}, v{tD}, v{tC}
    ds_bpermute_b32 v{tC}, v{vGA}, v{tD}
    v_readlane_b32 s{sCNT}, v{tB}, s{sWAVE}
    v_readlane_b32 s{sBLK}, v{tD}, s{sWAVE}
    v_add_u32 v{vRK}, v{vRK}, v{tC}
    v_lshrrev_b32 v{tC}, 4, v{vRK}
    v_mul_u32_u24 v{tC}, {BLKB}, v{tC}
    v_and_b32 v{tD}, 15, v{vRK}
    v_lshl_add_u32 v{a0}, v{tD}, 2, v{tC}
    v_lshl_add_u32 v{a1}, v{tD}, 3, v{tC}
    v_lshrrev_b32 v{tD}, 2, v{tD}
    v_lshl_add_u32 v{a2}, v{tD}, 5, v{tC}
    v_and_b32 v{tD}, 3, v{vRK}
    v_lshl_add_u32 v{a2}, v{tD}, 1, v{a2}
    s_mov_b64 exec, s[{sEX}:{sEX+1}]
    ds_write_b32 v{a0}, v{vSO} offset:{L_DESC}
    ds_write_b64 v{a1}, v[{vP0}:{vP1}] offset:{L_DESC+64}
    ds_write_b16 v{a2}, v{vRXY} offset:{L_DESC+192}
    ds_write_b16_d16_hi v{a2}, v{vRXY} offset:{L_DESC+200}
    ds_write_b16 v{a2}, v{vRZ} offset:{L_DESC+208}
    ds_write_b16 v{a2}, v{vOH} offset:{L_DESC+216}
    s_mov_b64 exec, -1
    s_add_u32 s{sNHT}, s{sCNT}, 15
    s_lshr_b32 s{sNHT}, s{sNHT}, 4
    s_lshr_b32 s{sBLK}, s{sBLK}, 4
    s_mul_i32 s{sBLK}, s{sBLK}, {BLKB}
    s_add_u32 s{sBLK}, s{sBLK}, {L_DESC}
    s_and_b32 s3, s{sCNT}, 15
    s_cbranch_scc0 K2_D1
    s_lshr_b32 s60, s{sCNT}, 4
    s_mul_i32 s60, s60, {BLKB}
    s_add_u32 s60, s60, s{sBLK}
    v_lshl_add_u32 v{a0}, v{tA}, 2, s60
    v_lshl_add_u32 v{a1}, v{tA}, 3, s60
    v_lshrrev_b32 v{tD}, 2, v{tA}
    v_lshl_add_u32 v{a2}, v{tD}, 5, s60
    v_and_b32 v{tD}, 3, v{tA}
    v_lshl_add_u32 v{a2}, v{tD}, 1, v{a2}
    v_mov_b32 v{vSO}, 0x7ffffe00
    v_mov_b32 v{vP0}, 0
    v_mov_b32 v{vP1}, 0
    v_cmp_le_u32 vcc, s3, v{tA}
    s_mov_b64 exec, vcc
    ds_write_b32 v{a0}, v{vSO}
    ds_write_b64 v{a1}, v[{vP0}:{vP1}] offset:64
    ds_write_b16 v{a2}, v{vP0} offset:216
    s_mov_b64 exec, -1
    K2_D1:
    s_waitcnt lgkmcnt(0)
    s_barrier
    s_cmp_eq_u32 s{sFIRST}, 0
    s_cbranch_scc1 K2_MAIN
    """)
    stamp(A, 5)
    A("s_waitcnt vmcnt(0)")
    stamp(A, 6)
    for q in range(8):
        A(f"ds_read_b128 v[{T+4*q}:{T+4*q+3}], v{vS} offset:{64*q}")
    for q in range(32):
        A(f"v_lshlrev_b32 v{2*q}, 16, v{T+q}\nv_and_b32 v{2*q+1}, 0xffff0000, v{T+q}")
    A(f"""
    s_mov_b32 s{sFIRST}, 0
    K2_MAIN:
    """)
    stamp(A, 7)
    if P.get("STAMP"): A(f"s_mov_b32 s79, s71\ns_mov_b32 s78, s{sNHT}")
    A(f"""
    s_cmp_eq_u32 s{sNHT}, 0
    s_cbranch_scc1 K2_NEXT
    K2_HT:
    """)
    F = T; PHI = T + 16; SA = T + 28; SB_ = T + 32; WR = T + 36
    SO = T + 4; Q = T + 12
    def w2off(ct, o): return L_W2 + 1024 * (ct * 6 + o)
    def ldw(r, ct, o): A(f"ds_read_b128 v[{r}:{r+3}], v{vW} offset:{w2off(ct, o)}")
    def ldwr(ct): A(f"v_lshrrev_b32 v{WR}, 1, v{vW}\nds_read_b64 v[{WR}:{WR+1}], v{WR} offset:{L_WR+512*ct}")
    A(f"""
    v_bfe_u32 v{tA}, v{vW}, 9, 1
    v_lshl_add_u32 v{tA}, v{tA}, 5, s{sBLK}
    ds_read_b128 v[{SO}:{SO+3}], v{tA}
    ds_read_b128 v[{SO+4}:{SO+7}], v{tA} offset:16
    v_bfe_u32 v{tB}, v{vW}, 4, 4
    v_lshl_add_u32 v{tB}, v{tB}, 3, s{sBLK}
    v_bfe_u32 v{tC}, v{vW}, 8, 2
    v_lshl_add_u32 v{tC}, v{tC}, 5, s{sBLK}
    ds_read_b128 v[{Q}:{Q+3}], v{tC} offset:192
    ds_read_b128 v[{Q+4}:{Q+7}], v{tC} offset:208
    ds_read_b64 v[{PP}:{PP+1}], v{tB} offset:64
    v_and_b32 v{tD}, 0x1f0, v{vW}
    """)
    for i in range(8):
        A(f"v_add_u32 v{SO+i}, v{SO+i}, v{tD}")
    A(f"s_mov_b32 m0, s{sBUF}")
    for i in range(8):
        if P.get("ONEDMA"):
            A(f"s_nop 0\nbuffer_load_dwordx4 v{SO+i}, s[{SV}:{SV+3}], 0 offen lds")
        for part in range(0 if P.get("ONEDMA") else 2):
            A(f"s_mov_b64 exec, s[{(sMH, sMV)[part]}:{(sMH, sMV)[part]+1}]")
            A(f"buffer_load_dwordx4 v{SO+i}, s[{(HT_, SV)[part]}:{(HT_, SV)[part]+3}], 0 offen lds")
        if i < 7: A(f"s_addk_i32 m0, {ROWP}")
    Sy, S, Sx, S2, Sz = SOP, SOP+2, SOP+4, SOP+6, SOP+8
    A(f"""
    s_mov_b64 exec, -1
    v_pk_lshlrev_b16 v{Q+6}, v{vSH}, v{Q+6}
    v_pk_lshlrev_b16 v{Q+7}, v{vSH}, v{Q+7}
    v_pk_ashrrev_i16 v{Q+6}, s{sF15}, v{Q+6}
    v_pk_ashrrev_i16 v{Q+7}, s{sF15}, v{Q+7}
    v_and_b32 v{S}, 0x3f803f80, v{Q+6}
    v_and_b32 v{S+1}, 0x3f803f80, v{Q+7}
    v_and_b32 v{S2}, 0x3f803f80, v{Q+6}
    v_and_b32 v{S2+1}, 0x3f803f80, v{Q+7}
    """)
    for c, r in enumerate((Sx, Sy, Sz)):
        A(f"v_and_b32 v{r}, v{Q+6}, v{Q+2*c}\nv_and_b32 v{r+1}, v{Q+7}, v{Q+2*c+1}")
    F0, F1, F2, F3 = F, F+4, F+8, F+12
    PV, PSs, PR = PHI, PHI+4, PHI+8
    if P["ORD"] == 0: slots = [F0, F1, F3, F2, SA, SB_]
    else: slots = [F0, SA, SB_, F1, F3, F2]
    ldwr(0)
    for o in range(6): ldw(slots[o], 0, o)
    A(f"s_add_u32 s{sBLK}, s{sBLK}, {BLKB}\ns_sub_u32 s{sNHT}, s{sNHT}, 1")
    stamp_acc(A, 11, 15)
    A("s_waitcnt vmcnt(0)")
    stamp_acc(A, 12, 15)
    A(f"ds_read_b128 v[{H}:{H+3}], v{vS}\nds_read_b128 v[{H+4}:{H+7}], v{vS} offset:64")
    def mm32(dst, a, b, c):
        A(f"v_mfma_f32_16x16x32_bf16 v[{dst}:{dst+3}], v[{a}:{a+3}], v[{b}:{b+3}], " + ("0" if c is None else f"v[{c}:{c+3}]"))
    def mm16(dst, a, b, c):
        A(f"v_mfma_f32_16x16x16_bf16 v[{dst}:{dst+3}], v[{a}:{a+1}], v[{b}:{b+1}], " + ("0" if c is None else f"v[{c}:{c+3}]"))
    def cvt2(d, x):
        A(f"v_cvt_pk_bf16_f32 v{d}, v{x}, v{x+1}\nv_cvt_pk_bf16_f32 v{d+1}, v{x+2}, v{x+3}")
    for ct in range(0 if P.get('NOCOMP') else 4):
        nx = ct < 3
        def ldv(r, c): A(f"ds_read_b64 v[{r}:{r+1}], v{vS} offset:{128*(c+1)+64*(ct>>1)+8*(ct&1)}")
        def wf():
            A(f"v_mfma_f32_16x16x4_4b_bf16 v[{F}:{F+15}], v[{PP}:{PP+1}], v[{WR}:{WR+1}], 0")
            if nx: ldwr(ct + 1)
        for o in range(6):
            ph = (PSs, PV, PR)[o >> 1]
            mm32(ph, H + 4*(o & 1), slots[o], None if (o & 1) == 0 else ph)
            if slots[o] == SA: ldv(SA, 0); ldv(SA + 2, 1)
            if slots[o] == SB_: ldv(SB_, 2)
            if (P["ORD"] == 0 and o == 3) or (P["ORD"] == 1 and o == 5): wf()
        mul4(A, PSs, PSs, F0)
        cvt2(F0, PSs)
        mul4(A, PV, PV, F1)
        mm16(4*ct, F0, S, 4*ct)
        mm16(F1, SA, ID, None)
        mm16(F3, SA + 2, ID, None)
        mul4(A, PR, PR, F2)
        mm16(F2, SB_, ID, None)
        cvt2(PHI + 6, PR)
        if nx:
            for r in (F0, SA, SB_): ldw(r, ct + 1, slots.index(r))
        mul4(A, F1, F1, PV)
        cvt2(PHI + 4, F1)
        if nx: ldw(F1, ct + 1, slots.index(F1))
        mul4(A, F3, F3, PV)
        mm32(16 + 4*ct, PHI + 4, S, 16 + 4*ct)
        cvt2(PHI + 8, F3)
        if nx: ldw(F3, ct + 1, slots.index(F3))
        mul4(A, F2, F2, PV)
        mm32(32 + 4*ct, PHI + 6, Sy, 32 + 4*ct)
        cvt2(PHI + 4, F2)
        if nx: ldw(F2, ct + 1, slots.index(F2))
        mm32(48 + 4*ct, PHI + 4, S2, 48 + 4*ct)
    stamp_acc(A, 13, 15)
    A(f"""
    s_cmp_lg_u32 s{sNHT}, 0
    s_cbranch_scc1 K2_HT
    K2_NEXT:
    s_add_u32 s{sBATCH}, s{sBATCH}, {CAP}
    s_cmp_ge_u32 s{sBATCH}, s{sTOT}
    s_cbranch_scc1 K2_EPI
    s_barrier
    v_bfe_u32 v{tA}, v{vW}, 4, 4
    v_lshlrev_b32 v{tA}, 2, v{tA}
    v_mov_b32 v{tB}, 0
    ds_write_b32 v{tA}, v{tB} offset:{L_CNT}
    s_cmp_ge_u32 s{sWAVE}, 4
    s_cbranch_scc1 K2_B1
    """)
    offs_load()
    A(f"""
    s_waitcnt vmcnt(0)
    s_branch K2_A2
    K2_EPI:
    """)
    stamp(A, 8)
    for q in range(8):
        x = T + 4*q
        for i in range(4): A(f"v_cvt_pk_bf16_f32 v{x+i}, v{8*q+2*i}, v{8*q+2*i+1}")
        A(f"ds_write_b128 v{vS}, v[{x}:{x+3}] offset:{64*q}")
    A(f"v_add_u32 v{H}, s{sBUF}, v{vW}")
    for i in range(8):
        A(f"ds_read_b128 v[{4*i}:{4*i+3}], v{H} offset:{ROWP*i}")
    dst_addr()
    for i in range(0 if P.get("NOST") else 8):
        A(f"buffer_store_dwordx4 v[{4*i}:{4*i+3}], v{tD}, s[{OUT}:{OUT+3}], 0 offen offset:{512*i}" + ["", " nt", " sc1", " sc0 sc1"][P.get("OST", 0)])
    stamp(A, 9)
    if P.get("STAMP"):
        A("s_waitcnt vmcnt(0)")
        stamp(A, 10)
        stamp_out(A, 8, 1, sWAVE, 40)
    A("K2_END:\ns_endpgm")
    return A, 128, (100 if P.get('STAMP') else 84), L_END

def mul4(A, d, a, b):
    for i in range(4): A(f"v_mul_f32 v{d+i}, v{a+i}, v{b+i}")

def emit(path):
    ks = [(NAME1, k1(), (W + 2, K1T)), (NAME2, k2(), (B, 64 * G))]
    out = ["; PaiNN message passing: kernel 1 keeps the edges inside the cutoff and bins them by destination,",
           "; kernel 2 gathers source rows and accumulates the messages per destination node with MFMA.",
           "; Generated by a hand-written generator script."]
    for name, (A, vg, sg, lds), (grid, blk) in ks:
        out.append(f"; @launch kernel={name} grid=({grid},1,1) block=({blk},1,1) lds={lds}")
    out.append('.amdgcn_target "amdgcn-amd-amdhsa--gfx950"\n.text')
    for name, (A, vg, sg, lds), _ in ks:
        body, n = A.finish()
        print(name, "instructions", len(A.ins), "hazard states", n, file=sys.stderr)
        out.append(f".globl {name}\n.p2align 8\n.type {name},@function\n{name}:\n{body}")
    out.append('.section .rodata,"a"')
    for name, (A, vg, sg, lds), _ in ks:
        out.append(f""".p2align 6
.amdhsa_kernel {name}
  .amdhsa_next_free_vgpr {vg}
  .amdhsa_next_free_sgpr {sg}
  .amdhsa_accum_offset {vg}
  .amdhsa_group_segment_fixed_size 0
  .amdhsa_kernarg_size 88
  .amdhsa_user_sgpr_count 2
  .amdhsa_user_sgpr_kernarg_segment_ptr 1
  .amdhsa_system_sgpr_workgroup_id_x 1
  .amdhsa_float_denorm_mode_32 3
.end_amdhsa_kernel""")
    open(path, "w").write("\n".join(out) + "\n")

emit(sys.argv[1])
```

```python
import sys
from asmlib import *

P = dict(NB=196, DSTEARLY=2, PF=0, ORD=0, TPF=1, LATE=1, NOH=0, TEARLY=2, HST=2, OST=2, NHELP=3, HELPA=5, PFPOS=0, GORD=0, GFL=0, STAG=1, PRIO=4, TWO=0, RST=0, PFS=2)
for a in sys.argv[2:]:
    k, v = a.split("="); P[k] = int(v)

N = 50000; E = 800000
EC = 4096; W = (E + EC - 1) // EC
NB = P["NB"]; B = (N + NB - 1) // NB; G = (NB + 15) // 16
assert B <= 256 and G <= 13
K1T = 1024
NT = 53; NNW = (N + 16 * NT - 1) // (16 * NT)
WS_W = 0; WS_WBYTES = 26624
WS_H = 0x2000000
WS_OFF = 0x10000
WS_REC = 0x60000
RECB = EC * 12
def magic(d, lim):
    for S in range(16, 32):
        M = -(-(1 << S) // d)
        if M < (1 << 24) and M * lim < (1 << 32) and all((x * M) >> S == x // d for x in range(lim)):
            return M, S
    raise RuntimeError
BM, BS = magic(NB, N)

NAME1 = "painn_bin_kernel"; NAME2 = "painn_msg_kernel"

def srd(A, d, lo, hi, size):
    A(f"s_mov_b32 s{d}, {lo}\ns_mov_b32 s{d+1}, {hi}\ns_mov_b32 s{d+2}, {size}\ns_mov_b32 s{d+3}, 0x20000")
def srd_off(A, d, base, off, size):
    A(f"s_add_u32 s{d}, s{base}, {off}\ns_addc_u32 s{d+1}, s{base+1}, 0\ns_mov_b32 s{d+2}, {size}\ns_mov_b32 s{d+3}, 0x20000")

WS_STAMP = 0x1000000
STV = [0]
def stamp(A, k):
    if not P.get("STAMP"): return
    if STV[0]: A(f"s_memrealtime s[96:97]\ns_waitcnt lgkmcnt(0)\nv_writelane_b32 v{STV[0]}, s96, {k}")
    else: A(f"s_memrealtime s[96:97]\ns_waitcnt lgkmcnt(0)\ns_mov_b32 s{64+k}, s96")
def stamp_acc(A, k, j):
    if not P.get("STAMP"): return
    A(f"s_memrealtime s[96:97]\ns_waitcnt lgkmcnt(0)\ns_sub_u32 s97, s96, s{64+j}\ns_add_u32 s{64+k}, s{64+k}, s97\ns_mov_b32 s{64+j}, s96")
def stamp_out(A, wsreg, region, wave_sgpr, v):
    if not P.get("STAMP"): return
    A(f"s_mov_b64 exec, -1\ns_lshl_b32 s96, s2, 4\ns_add_u32 s96, s96, s{wave_sgpr}\ns_lshl_b32 s96, s96, 6\ns_add_u32 s96, s96, {WS_STAMP + region * 0x80000}")
    srd_off(A, 92, wsreg, "s96", 64)
    if STV[0]: A(f"v_mov_b32 v{v}, v{STV[0]}")
    else:
        for k in range(16): A(f"v_writelane_b32 v{v}, s{64+k}, {k}")
    A(f"v_mbcnt_lo_u32_b32 v{v+1}, -1, 0\nv_mbcnt_hi_u32_b32 v{v+1}, -1, v{v+1}\nv_lshlrev_b32 v{v+1}, 2, v{v+1}")
    A(f"buffer_store_dword v{v}, v{v+1}, s[92:95], 0 offen")
def stamp_init(A):
    if not P.get("STAMP"): return
    if STV[0]: A(f"v_mov_b32 v{STV[0]}, 0")
    else:
        for k in range(16): A(f"s_mov_b32 s{64+k}, 0")
    stamp(A, 0)

def wave_scan(A, x):
    for m in ("row_shr:1 row_mask:0xf", "row_shr:2 row_mask:0xf", "row_shr:4 row_mask:0xf", "row_shr:8 row_mask:0xf",
              "row_bcast:15 row_mask:0xa", "row_bcast:31 row_mask:0xc"):
        A(f"v_add_u32_dpp v{x}, v{x}, v{x} {m} bank_mask:0xf")

PS = 75024
L1_CNT = 150272; L1_END = L1_CNT + 2048
def k1():
    A = Asm(); STV[0] = 62
    SRC, DST, POS, REC, OFF = 12, 16, 20, 24, 28
    sWAVE, sX5, sVAL = 44, 46, 48
    sM = 50
    sA = 82
    A(f"""
    s_cmp_gt_u32 s2, {W+NNW}
    s_cbranch_scc1 K1_END
    s_load_dwordx4 s[4:7], s[0:1], 8
    s_load_dwordx2 s[8:9], s[0:1], 24
    s_load_dwordx2 s[10:11], s[0:1], 80
    v_lshrrev_b32 v1, 6, v0
    v_and_b32 v2, 63, v0
    v_readfirstlane_b32 s{sWAVE}, v1
    v_lshlrev_b32 v3, 4, v2                    ; lane*16
    """)
    stamp_init(A)
    A(f"""
    s_cmp_ge_u32 s2, {W}
    s_cbranch_scc1 K1_NODE
    v_lshlrev_b32 v1, 4, v0
    v_and_b32 v4, 255, v0
    v_lshlrev_b32 v4, 2, v4
    v_add_u32 v4, {L1_CNT}, v4
    v_mov_b32 v5, 0
    ds_write_b32 v4, v5
    s_lshl_b32 s3, s2, 14
    s_sub_u32 s45, {E*4}, s3
    s_min_u32 s45, s45, {EC*4}
    v_cmp_gt_u32 vcc, s45, v1
    s_mov_b64 s[{sVAL}:{sVAL+1}], vcc
    s_waitcnt lgkmcnt(0)
    """)
    srd_off(A, SRC, 6, "s3", "s45")
    srd_off(A, DST, 8, "s3", "s45")
    srd(A, POS, "s4", "s5", N*6)
    if P["TPF"]:
        A(f"""
        s_lshr_b32 s3, s2, 3
        s_min_u32 s3, s3, 23
        s_mul_i32 s3, s3, {98*128}
        v_lshlrev_b32 v46, 6, v0
        v_cmp_gt_u32 vcc, {98*2}, v0
        s_mov_b64 exec, vcc
        buffer_load_dword v45, v46, s[{POS}:{POS+3}], s3 offen
        ;@ready v45
        s_mov_b64 exec, -1
        """)
    A(f"""
    buffer_load_dwordx4 v[4:7], v1, s[{SRC}:{SRC+3}], 0 offen
    buffer_load_dwordx4 v[8:11], v1, s[{DST}:{DST+3}], 0 offen
    s_cmp_lt_u32 s{sWAVE}, 9
    s_cselect_b64 s[{sX5}:{sX5+1}], -1, 1
    s_cmp_eq_u32 s{sWAVE}, 9
    s_cselect_b32 s{sX5}, 0x1ffff, s{sX5}
    s_cmp_le_u32 s{sWAVE}, 9
    s_cselect_b32 s45, {16*1024}, 0
    """)
    def piece(p):
        A(f"s_lshl_b32 s3, s{sWAVE}, 10\ns_add_u32 m0, s3, {(p&1)*PS}\ns_add_u32 s3, s3, {p*PS}")
        for r in range(5):
            if r == 4: A(f"s_mov_b64 exec, s[{sX5}:{sX5+1}]")
            A(f"buffer_load_dwordx4 v3, s[{POS}:{POS+3}], s3 offen lds")
            if r < 3: A(f"s_add_u32 m0, m0, {16*1024}\ns_add_u32 s3, s3, {16*1024}")
            if r == 3: A(f"s_add_u32 m0, m0, s45\ns_add_u32 s3, s3, s45")
        A("s_mov_b64 exec, -1")
    def lookup(p):
        for j in range(8):
            hi, od = f"s[{sM+4*j}:{sM+4*j+1}]", f"s[{sM+4*j+2}:{sM+4*j+3}]"
            A([f"s_nor_b64 exec, {hi}, {od}", f"s_andn2_b64 exec, {od}, {hi}", f"s_andn2_b64 exec, {hi}, {od}", f"s_and_b64 exec, {hi}, {od}"][p])
            A(f"ds_read2_b32 v[{12+2*j}:{13+2*j}], v{28+j} offset1:1")
            A(f";@ready v[{12+2*j}:{13+2*j}]")
        A("s_mov_b64 exec, -1")
    TE = P["TEARLY"]
    for p in range(TE): piece(p)
    A(f"s_mul_i32 s3, s2, {RECB}\ns_add_u32 s3, s3, {WS_REC}")
    srd_off(A, REC, 10, "s3", RECB)
    A(f"s_lshl_b32 s3, s2, 10\ns_add_u32 s3, s3, {WS_OFF}")
    srd_off(A, OFF, 10, "s3", B*4)
    A(f"s_waitcnt vmcnt({5*TE})\n;@ready v[4:11]")
    stamp(A, 1)
    if TE == 0: piece(0)
    for j in range(8):
        A(f"""
        v_mul_u32_u24 v{28+j}, 6, v{4+j}
        v_cmp_lt_u32 vcc, {2*PS//6-1}, v{4+j}
        v_and_b32 v{28+j}, -4, v{28+j}
        v_subrev_u32 v36, {2*PS}, v{28+j}
        s_mov_b64 s[{sM+4*j}:{sM+4*j+1}], vcc
        v_min_u32 v{28+j}, v{28+j}, v36
        v_cmp_lt_u32 vcc, {PS-1}, v{28+j}
        s_mov_b64 s[{sM+4*j+2}:{sM+4*j+3}], vcc
        """)
    if TE < 2: piece(1)
    if P["TWO"]:
        A("s_waitcnt vmcnt(0)\ns_barrier")
        stamp(A, 2)
        lookup(0); lookup(1)
        A("s_waitcnt lgkmcnt(0)\ns_barrier")
        stamp(A, 8)
        piece(2); piece(3)
        A("s_waitcnt vmcnt(0)\ns_barrier")
        stamp(A, 4)
        lookup(2); lookup(3)
    else:
        A("s_waitcnt vmcnt(5)\ns_barrier")
        stamp(A, 2)
        lookup(0)
        A("s_waitcnt lgkmcnt(0)\ns_barrier")
        piece(2)
        A("s_waitcnt vmcnt(5)\ns_barrier")
        stamp(A, 8)
        lookup(1)
        A("s_waitcnt lgkmcnt(0)\ns_barrier")
        piece(3)
        A("s_waitcnt vmcnt(5)\ns_barrier")
        stamp(A, 9)
        lookup(2)
        A("s_waitcnt vmcnt(0)\ns_barrier")
        stamp(A, 4)
        lookup(3)
    A("v_mov_b32 v63, 1")
    for j in range(4):
        s_, d = 4+j, 8+j
        A(f"""
        v_mul_u32_u24 v{56+j}, {BM}, v{d}
        v_lshl_or_b32 v{36+4*j}, v{d}, 16, v{s_}
        v_lshrrev_b32 v{56+j}, {BS-2}, v{56+j}
        v_lshlrev_b32 v{s_}, 4, v{s_}
        v_and_b32 v{56+j}, -4, v{56+j}
        v_lshlrev_b32 v{d}, 4, v{d}
        v_add_u32 v{56+j}, {L1_CNT}, v{56+j}
        """)
    A("s_waitcnt lgkmcnt(0)")
    thr = 0x41c9999a
    for j in range(4):
        s_, d, ps, pd = 4+j, 8+j, 12+2*j, 20+2*j
        r0, r1, r2, rk = 36+4*j, 37+4*j, 38+4*j, 39+4*j
        t = 52
        A(f"""
        v_alignbit_b32 v{ps}, v{ps+1}, v{ps}, v{s_}
        v_alignbit_b32 v{pd}, v{pd+1}, v{pd}, v{d}
        v_lshrrev_b32 v{ps+1}, v{s_}, v{ps+1}
        v_lshrrev_b32 v{pd+1}, v{d}, v{pd+1}
        v_lshlrev_b32 v{t}, 16, v{ps}
        v_lshlrev_b32 v{t+1}, 16, v{pd}
        v_and_b32 v{ps}, 0xffff0000, v{ps}
        v_and_b32 v{pd}, 0xffff0000, v{pd}
        v_lshlrev_b32 v{ps+1}, 16, v{ps+1}
        v_lshlrev_b32 v{pd+1}, 16, v{pd+1}
        v_sub_f32 v{t}, v{t}, v{t+1}
        v_sub_f32 v{t+1}, v{ps}, v{pd}
        v_sub_f32 v{t+2}, v{ps+1}, v{pd+1}
        v_mul_f32 v{t+3}, v{t}, v{t}
        v_fmac_f32 v{t+3}, v{t+1}, v{t+1}
        v_fmac_f32 v{t+3}, v{t+2}, v{t+2}
        v_subrev_u32 v{t+3}, {thr:#x}, v{t+3}
        v_cmp_le_u32 vcc, {0x7f800000-thr:#x}, v{t+3}
        v_cvt_pk_bf16_f32 v{r1}, v{t}, v{t+1}
        v_cvt_pk_bf16_f32 v{r2}, v{t+2}, v{t+2}
        s_and_b64 s[{sA+2*j}:{sA+2*j+1}], vcc, s[{sVAL}:{sVAL+1}]
        s_mov_b64 exec, s[{sA+2*j}:{sA+2*j+1}]
        ds_add_rtn_u32 v{rk}, v{56+j}, v63
        s_mov_b64 exec, -1
        """)
    stamp(A, 5)
    A("s_waitcnt lgkmcnt(0)\ns_barrier")
    A(f"""
    v_add_u32 v1, {L1_CNT}, v3
    ds_read_b128 v[4:7], v1
    v_add_u32 v9, v4, v5
    v_add_u32 v10, v9, v6
    v_add_u32 v11, v10, v7
    v_mov_b32 v12, v11
    """)
    wave_scan(A, 12)
    A(f"""
    v_sub_u32 v12, v12, v11
    v_add_u32 v13, v12, v4
    v_add_u32 v14, v12, v9
    v_add_u32 v15, v12, v10
    ds_write_b128 v1, v[12:15] offset:1024
    """)
    for j in range(4):
        A(f"ds_read_b32 v{16+j}, v{56+j} offset:1024")
    rst = ["", " nt", " sc1", " sc0 sc1"][P["RST"]]
    A(f"""
    s_cmp_lg_u32 s{sWAVE}, 0
    s_cbranch_scc1 K1_NOOFF
    v_lshl_or_b32 v4, v4, 16, v12
    v_lshl_or_b32 v5, v5, 16, v13
    v_lshl_or_b32 v6, v6, 16, v14
    v_lshl_or_b32 v7, v7, 16, v15
    buffer_store_dwordx4 v[4:7], v3, s[{OFF}:{OFF+3}], 0 offen{rst}
    K1_NOOFF:
    """)
    for j in range(4):
        r0 = 36+4*j
        A(f"""
        v_add_u32 v{16+j}, v{16+j}, v{r0+3}
        v_mul_u32_u24 v{16+j}, 12, v{16+j}
        s_mov_b64 exec, s[{sA+2*j}:{sA+2*j+1}]
        buffer_store_dwordx3 v[{r0}:{r0+2}], v{16+j}, s[{REC}:{REC+3}], 0 offen{rst}
        s_mov_b64 exec, -1
        """)
    stamp(A, 6)
    if P.get("STAMP"):
        A("s_waitcnt vmcnt(0)")
        stamp(A, 7)
        stamp_out(A, 10, 0, sWAVE, 4)
    A("s_endpgm")

    SVR, HO, W1 = 12, 16, 20
    LT = 8192
    vR0, vR1, vS0, vS1, vL = 8, 9, 10, 11, 12
    SB = 16; WA = 64; D1 = 96; E1 = 112
    A(f"""
    K1_NODE:
    s_cmp_eq_u32 s2, {W+NNW}
    s_cbranch_scc1 K1_PREP
    s_load_dwordx2 s[90:91], s[0:1], 0
    s_load_dwordx2 s[92:93], s[0:1], 40
    s_sub_u32 s3, s2, {W}
    s_mul_i32 s3, s3, {NT*16}
    s_sub_u32 s45, {N}, s3
    s_min_u32 s45, s45, {NT*16}
    s_lshl_b32 s45, s45, 9
    s_lshl_b32 s3, s3, 9
    v_and_b32 v4, 7, v2
    v_lshrrev_b32 v5, 4, v2
    v_xor_b32 v4, v4, v5
    v_lshlrev_b32 v4, 4, v4
    v_lshrrev_b32 v6, 3, v2
    v_lshl_add_u32 v{vR0}, v6, 9, v4
    v_xor_b32 v{vR1}, 64, v{vR0}
    v_add_u32 v{vR1}, 4096, v{vR1}
    v_bfe_u32 v7, v2, 4, 1
    s_and_b32 s46, s{sWAVE}, 1
    s_lshl_b32 s46, s46, 1
    v_or_b32 v7, s46, v7
    v_lshlrev_b32 v7, 5, v7
    v_xor_b32 v7, v7, v3
    s_waitcnt lgkmcnt(0)
    """)
    srd_off(A, SVR, 90, "s3", "s45")
    A(f"s_add_u32 s3, s3, {WS_H}")
    srd_off(A, HO, 10, "s3", "s45")
    srd(A, W1, "s92", "s93", 8192)
    A(f"""
    s_cmp_lt_u32 s{sWAVE}, 8
    s_cselect_b64 exec, -1, 0
    s_lshl_b32 s3, s{sWAVE}, 10
    s_mov_b32 m0, s3
    buffer_load_dwordx4 v7, s[{W1}:{W1+3}], s3 offen lds
    s_mov_b64 exec, -1
    s_lshl_b32 s46, s{sWAVE}, 11
    s_add_u32 s46, s46, {LT}
    s_lshl_b32 s47, s{sWAVE}, 13
    """)
    for k in range(4):
        A(f"""
        s_add_u32 m0, s46, {32768*k}
        s_add_u32 s3, s47, {16*8192*k}
        buffer_load_dwordx4 v{vR0}, s[{SVR}:{SVR+3}], s3 offen lds
        s_add_u32 m0, m0, 1024
        buffer_load_dwordx4 v{vR1}, s[{SVR}:{SVR+3}], s3 offen lds
        """)
    PF = P["PF"]
    if PF:
        A(f"v_lshlrev_b32 v13, 9, v2\ns_lshl_b32 s3, s{sWAVE}, 15")
        for c in range(PF):
            A(f"buffer_load_dword v14, v13, s[{SVR}:{SVR+3}], s3 offen offset:{128 + 64*c*P['PFS']}\n;@ready v14")
    A(f"""
    v_bfe_u32 v4, v2, 1, 3
    v_xor_b32 v4, v4, v5
    v_and_b32 v6, 15, v2
    v_lshlrev_b32 v6, 7, v6
    v_lshl_add_u32 v4, v4, 4, v6
    v_add_u32 v{vS0}, s46, v4
    v_add_u32 v{vL}, s46, v3
    v_bfe_u32 v57, v2, 2, 2
    v_lshl_add_u32 v58, v5, 3, v57             ; row 8g+r
    v_lshlrev_b32 v58, 7, v58
    v_and_b32 v59, 3, v2
    v_lshl_add_u32 v58, v59, 3, v58
    v_lshrrev_b32 v57, 1, v57
    v_and_b32 v56, 1, v5
    v_lshl_or_b32 v57, v56, 1, v57
    v_lshlrev_b32 v57, 5, v57
    v_xor_b32 v58, v58, v57
    v_xor_b32 v59, 32, v58
    v_xor_b32 v60, 64, v58
    v_xor_b32 v61, 96, v58
    s_waitcnt vmcnt({8+PF})
    s_barrier
    """)
    for u in range(4):
        for t in range(2):
            for hf in range(2):
                x = WA + 8*u + 4*t + 2*hf
                A(f"ds_read_b64_tr_b16 v[{x}:{x+1}], v{58+u} offset:{4096*t+512*hf}")
    stamp(A, 1)
    A(f"""
    s_mov_b32 s48, s{sWAVE}
    K1_TILE:
    v_xor_b32 v{vS1}, 64, v{vS0}
    s_waitcnt vmcnt({6+PF})
    ds_read_b128 v[{SB}:{SB+3}], v{vS0}
    ds_read_b128 v[{SB+4}:{SB+7}], v{vS1}
    """)
    for u in range(4):
        for t in range(2):
            x = WA + 8*u + 4*t
            A(f"v_mfma_f32_16x16x32_bf16 v[{D1+4*u}:{D1+4*u+3}], v[{x}:{x+3}], v[{SB+4*t}:{SB+4*t+3}], " + ("0" if t == 0 else f"v[{D1+4*u}:{D1+4*u+3}]"))
    for u in range(4):
        x = D1 + 4*u; e = E1 + 4*u
        A(f"v_cvt_pk_bf16_f32 v{x+1}, v{x}, v{x+1}\nv_cvt_pk_bf16_f32 v{x+3}, v{x+2}, v{x+3}")
        A(f"v_lshlrev_b32 v{x}, 16, v{x+1}\nv_and_b32 v{x+1}, 0xffff0000, v{x+1}\nv_lshlrev_b32 v{x+2}, 16, v{x+3}\nv_and_b32 v{x+3}, 0xffff0000, v{x+3}")
        for i in range(4): A(f"v_mul_f32 v{e+i}, 0xbfb8aa3b, v{x+i}")
        for i in range(4): A(f"v_exp_f32 v{e+i}, v{e+i}")
        for i in range(4): A(f"v_add_f32 v{e+i}, 1.0, v{e+i}")
        for i in range(4): A(f"v_rcp_f32 v{e+i}, v{e+i}")
        for i in range(4): A(f"v_mul_f32 v{e+i}, v{e+i}, v{x+i}")
        A(f"v_cvt_pk_bf16_f32 v{SB+2*u}, v{e}, v{e+1}\nv_cvt_pk_bf16_f32 v{SB+2*u+1}, v{e+2}, v{e+3}")
    hst = ["", " nt", " sc1", " sc0 sc1"][P["HST"]]
    A(f"""
    ds_write_b128 v{vS0}, v[{SB}:{SB+3}]
    ds_write_b128 v{vS1}, v[{SB+4}:{SB+7}]
    ds_read_b128 v[{SB+8}:{SB+11}], v{vL}
    ds_read_b128 v[{SB+12}:{SB+15}], v{vL} offset:1024
    v_add_u32 v{vS0}, 0x8000, v{vS0}
    v_add_u32 v{vL}, 0x8000, v{vL}
    buffer_store_dwordx4 v[{SB+8}:{SB+11}], v{vR0}, s[{HO}:{HO+3}], s47 offen{hst}
    buffer_store_dwordx4 v[{SB+12}:{SB+15}], v{vR1}, s[{HO}:{HO+3}], s47 offen{hst}
    s_add_u32 s47, s47, {16*8192}
    s_add_u32 s48, s48, 16
    s_cmp_lt_u32 s48, {NT}
    s_cbranch_scc1 K1_TILE
    """)
    stamp(A, 6)
    if P.get("STAMP"):
        A("s_waitcnt vmcnt(0)")
        stamp(A, 7)
        stamp_out(A, 10, 0, sWAVE, 4)
    A("s_endpgm")

    A(f"""
    K1_PREP:
    s_load_dwordx4 s[12:15], s[0:1], 48
    v_bfe_u32 v1, v0, 2, 2
    v_and_b32 v4, 3, v0
    v_lshlrev_b32 v4, 1, v4
    v_lshl_add_u32 v1, v1, 4, v4
    v_lshrrev_b32 v6, 4, v2
    s_waitcnt lgkmcnt(0)
    """)
    srd(A, 24, "s12", "s13", 64*192*2)
    srd(A, 28, "s14", "s15", 4*192*2)
    srd_off(A, 32, 10, WS_W, WS_WBYTES)
    A(f"""
    s_mov_b32 s3, s{sWAVE}
    v_mul_u32_u24 v4, {4*384}, v6
    v_add_u32 v4, v4, v1
    v_add_u32 v5, {16*384}, v4
    K1_PW2:
    s_and_b32 s36, s3, 1
    s_lshr_b32 s37, s3, 1
    s_mul_i32 s38, s37, 43
    s_lshr_b32 s38, s38, 7
    s_mul_i32 s39, s38, 3
    s_sub_u32 s39, s37, s39
    s_mul_i32 s36, s36, {32*384}
    s_lshl_b32 s39, s39, 7
    s_add_u32 s36, s36, s39
    s_lshr_b32 s39, s38, 1
    s_lshl_b32 s39, s39, 6
    s_add_u32 s36, s36, s39
    s_and_b32 s39, s38, 1
    s_lshl_b32 s39, s39, 3
    s_add_u32 s36, s36, s39
    """)
    for j in range(8):
        A(f"buffer_load_ushort v{8+j}, v{4+(j>>2)}, s[24:27], s36 offen offset:{384*(j&3)}")
    A(f"""
    s_lshl_b32 s36, s3, 10
    v_lshl_or_b32 v16, v9, 16, v8
    v_lshl_or_b32 v17, v11, 16, v10
    v_lshl_or_b32 v18, v13, 16, v12
    v_lshl_or_b32 v19, v15, 16, v14
    buffer_store_dwordx4 v[16:19], v3, s[32:35], s36 offen
    s_add_u32 s3, s3, 16
    s_cmp_lt_u32 s3, 24
    s_cbranch_scc1 K1_PW2
    s_cmp_ge_u32 s3, 28
    s_cbranch_scc1 K1_END
    s_sub_u32 s3, s3, 24
    s_lshr_b32 s36, s3, 1
    s_lshl_b32 s36, s36, 6
    s_and_b32 s37, s3, 1
    s_lshl_b32 s37, s37, 3
    s_add_u32 s36, s36, s37
    v_min_u32 v6, 2, v6
    v_lshl_add_u32 v4, v6, 7, v1
    """)
    for j in range(4):
        A(f"buffer_load_ushort v{8+j}, v4, s[28:31], s36 offen offset:{384*j}")
    A(f"""
    s_lshl_b32 s36, s3, 9
    s_add_u32 s36, s36, 24576
    v_lshlrev_b32 v3, 3, v2
    v_lshl_or_b32 v8, v9, 16, v8
    v_lshl_or_b32 v9, v11, 16, v10
    buffer_store_dwordx2 v[8:9], v3, s[32:35], s36 offen
    K1_END:
    s_endpgm
    """)
    return A, 128, 100, L1_END

NW = 12
L_W2 = 0; L_WR = 24576
L_DESC = 26624; NBLK = 64; BLKB = 320
L_CNT = L_DESC + NBLK * BLKB
L_BUF = L_CNT + 256
BUFB = 8192
L_END = L_BUF + G * BUFB
CAP = min(NBLK * 16 - G * 15, NW * 64)
assert L_END <= 163840 and G == 13 and L_BUF % 256 == 0

def k2():
    A = Asm(); STV[0] = 0
    SV, DR, OUT, OFF, REC, WW, HT_ = 20, 24, 28, 32, 36, 40, 80
    sWAVE, sBUF, sTOT, sBATCH, sWBASE, sCNT, sBLK, sNHT = 44, 45, 46, 47, 48, 49, 50, 51
    sHI, sF15, sGRP, sPASS, sNODE0, sFIRST = 52, 53, 54, 55, 56, 57
    sEX = 58
    sINIT, sCNT12, sBLK12 = 61, 62, 63
    sFREQ = 14
    vW, vS0, vS1, vSH = 64, 65, 66, 67
    H = 68; V = 76; SOP = 100; PP = 110; ID = 112; SON = 114
    vDA0, vDA1, vL8, vD0, vD1, vD2 = 116, 117, 118, 119, 120, 121
    T = 122
    A(f"""
    s_cmp_ge_u32 s2, {B}
    s_cbranch_scc1 K2_END
    """)
    stamp_init(A)
    tA, tB, tC, tD = T, T+1, T+2, T+3
    vO = T + 4
    vR0, vR1 = T + 40, T + 41
    A(f"""
    s_load_dwordx2 s[8:9], s[0:1], 80
    s_load_dwordx2 s[4:5], s[0:1], 0
    s_load_dwordx2 s[6:7], s[0:1], 64
    s_load_dwordx2 s[10:11], s[0:1], 32
    v_lshrrev_b32 v1, 6, v0
    v_and_b32 v2, 63, v0
    v_readfirstlane_b32 s{sWAVE}, v1
    v_lshlrev_b32 v{vW}, 4, v2
    v_mov_b32 v3, 0
    v_lshlrev_b32 v4, 2, v2
    ds_write_b32 v4, v3 offset:{L_CNT}
    s_mul_i32 s{sNODE0}, s2, {NB}
    s_mov_b32 s{sBATCH}, 0
    s_mov_b32 s{sFIRST}, 1
    s_mov_b32 s{sINIT}, 1
    s_mov_b32 s{sPASS}, 0
    s_mov_b32 s{sGRP}, s{sWAVE}
    s_mov_b32 s{sHI}, 0xffff0000
    s_mov_b32 s{sF15}, 0x000f000f
    s_waitcnt lgkmcnt(0)
    s_load_dwordx2 s[12:13], s[10:11], 0
    """)
    srd_off(A, OFF, 8, WS_OFF, W * 1024)
    def offs_load():
        A(f"""
        s_lshl_b32 s3, s{sWAVE}, 16
        s_lshl_b32 s60, s2, 2
        s_add_u32 s3, s3, s60
        v_lshlrev_b32 v{tA}, 6, v{vW}
        buffer_load_dword v{vO}, v{tA}, s[{OFF}:{OFF+3}], s3 offen
        """)
    offs_load()
    A("s_barrier")
    srd_off(A, WW, 8, WS_W, WS_WBYTES)
    for r in range(3):
        if r < 2: A(f"s_add_u32 s3, s{sWAVE}, {r*NW}\ns_lshl_b32 s3, s3, 10\ns_mov_b32 m0, s3")
        else: A(f"s_cmp_lt_u32 s{sWAVE}, 2\ns_cselect_b64 exec, -1, 1\ns_cselect_b32 s60, {NW*1024}, 0\ns_add_u32 s3, s3, s60\ns_mov_b32 m0, s3")
        A(f"buffer_load_dwordx4 v{vW}, s[{WW}:{WW+3}], s3 offen lds")
    A(f"""
    s_mov_b64 exec, -1
    s_add_u32 s60, s{sNODE0}, {NB}
    s_min_u32 s60, s60, {N}
    s_sub_u32 s60, s60, s{sNODE0}
    s_lshl_b32 s60, s60, 9
    s_lshl_b32 s3, s{sNODE0}, 9
    """)
    srd_off(A, DR, 4, "s3", "s60")
    srd_off(A, OUT, 6, "s3", "s60")
    A(f"""
    v_and_b32 v5, 7, v2
    v_lshrrev_b32 v6, 4, v2
    v_xor_b32 v5, v5, v6
    v_lshlrev_b32 v{vDA0}, 4, v5
    v_xor_b32 v{vDA1}, 64, v{vDA0}
    v_lshrrev_b32 v5, 3, v2
    v_lshlrev_b32 v{vD0}, 2, v5
    """)
    def row_addr():
        A(f"""
        v_lshl_add_u32 v{vR0}, v{vD0}, 7, v{vDA0}
        v_lshl_add_u32 v{vR1}, v{vD0}, 7, v{vDA1}
        v_add_u32 v{vR1}, 4096, v{vR1}
        """)
    def dst_pair():
        if P["STAG"]:
            A(f"s_sub_u32 s3, s60, 4\ns_cselect_b32 s3, {4*12}, s3\ns_lshr_b32 s3, s3, 2")
        else: A("s_lshr_b32 s3, s60, 2")
        A(f"""
        s_lshl_b32 s3, s3, 13
        s_and_b32 s18, s60, 3
        s_lshl_b32 s19, s18, 11
        s_add_u32 s19, s19, s3
        s_add_u32 m0, s19, {L_BUF}
        s_lshl_b32 s18, s18, 7
        s_add_u32 s3, s3, s18
        buffer_load_dwordx4 v{vR0}, s[{DR}:{DR+3}], s3 offen lds
        s_add_u32 m0, m0, 1024
        s_nop 0
        buffer_load_dwordx4 v{vR1}, s[{DR}:{DR+3}], s3 offen lds
        """)
    row_addr()
    KE = P["DSTEARLY"]; NP = 4 * G
    for r in range(KE):
        A(f"s_add_u32 s60, s{sWAVE}, {r*NW}")
        dst_pair()
    NH = P["NHELP"]; H0 = NW - NH
    rest = NP - KE * NW
    RA = min(P["HELPA"], (rest + NH - 1) // NH)
    def helper(tag, lo, hi):
        if lo >= hi: return
        A(f"""
        s_cmp_eq_u32 s{sFIRST}, 0
        s_cbranch_scc1 K2_{tag}X
        s_cmp_lt_u32 s{sWAVE}, {H0}
        s_cbranch_scc1 K2_{tag}X
        s_add_u32 s60, s{sWAVE}, {lo - H0}
        K2_{tag}L:
        s_cmp_ge_u32 s60, {hi}
        s_cbranch_scc1 K2_{tag}X
        """)
        dst_pair()
        A(f"s_add_u32 s60, s60, {NH}\ns_branch K2_{tag}L\nK2_{tag}X:")
    srd_off(A, REC, 8, WS_REC, W * RECB)
    srd_off(A, HT_, 8, WS_H, N * 512)
    srd(A, SV, "s4", "s5", N * 512)
    def set_group():
        A(f"""
        s_min_u32 s{sBUF}, s{sGRP}, {G-1}
        s_lshl_b32 s{sBUF}, s{sBUF}, 13
        s_add_u32 s{sBUF}, s{sBUF}, {L_BUF}
        v_bfe_u32 v{tA}, v{vW}, 5, 3
        v_lshrrev_b32 v{tB}, 8, v{vW}
        v_xor_b32 v{tA}, v{tA}, v{tB}
        v_lshlrev_b32 v{tB}, 4, v{vD1}
        v_lshl_add_u32 v{tA}, v{tA}, 4, v{tB}
        v_add_u32 v{vS0}, s{sBUF}, v{tA}
        v_xor_b32 v{vS1}, 64, v{vS0}
        """)
    A(f"""
    v_and_b32 v5, 15, v2
    v_lshlrev_b32 v{vD1}, 3, v5
    v_sub_u32 v{vSH}, 15, v5
    v_mul_u32_u24 v{vSH}, 0x10001, v{vSH}
    v_lshlrev_b32 v{vD2}, 5, v6
    v_lshlrev_b32 v{vL8}, 3, v2
    v_lshlrev_b32 v6, 2, v6
    v_sub_u32 v5, v5, v6
    v_mov_b32 v7, 0x3f80
    v_mov_b32 v8, 0x3f800000
    v_cmp_eq_u32 vcc, 0, v5
    v_cndmask_b32 v{ID}, 0, v7, vcc
    v_cmp_eq_u32 vcc, 1, v5
    v_cndmask_b32 v{ID}, v{ID}, v8, vcc
    v_cmp_eq_u32 vcc, 2, v5
    v_cndmask_b32 v{ID+1}, 0, v7, vcc
    v_cmp_eq_u32 vcc, 3, v5
    v_cndmask_b32 v{ID+1}, v{ID+1}, v8, vcc
    """)
    set_group()
    A(f"""
    s_waitcnt lgkmcnt(0)
    s_lshl_b32 s{sFREQ}, s12, 16
    s_and_b32 s{sFREQ+1}, s12, s{sHI}
    s_lshl_b32 s{sFREQ+2}, s13, 16
    s_and_b32 s{sFREQ+3}, s13, s{sHI}
    s_cmp_ge_u32 s{sWAVE}, 4
    s_cbranch_scc1 K2_B1
    s_waitcnt vmcnt({3+2*KE})
    K2_A2:
    """)
    stamp(A, 1)
    vC, vSt, vB, vI, vE = T+5, T+6, T+7, T+8, T+9
    A(f"""
    v_lshrrev_b32 v{vC}, 16, v{vO}
    v_and_b32 v{vSt}, 0xffff, v{vO}
    v_mov_b32 v{vB}, v{vC}
    """)
    wave_scan(A, vB)
    A(f"""
    s_cmp_eq_u32 s{sFIRST}, 0
    s_cbranch_scc1 K2_B0
    v_readlane_b32 s3, v{vB}, 63
    v_mov_b32 v{tA}, {L_CNT+64}
    v_mov_b32 v{tB}, s3
    s_mov_b64 exec, 1
    ds_add_rtn_u32 v{tB}, v{tA}, v{tB}
    s_mov_b64 exec, -1
    v_readfirstlane_b32 s{sWBASE}, v{tB}
    K2_B0:
    v_sub_u32 v{vB}, v{vB}, v{vC}
    s_sub_u32 s3, s{sWBASE}, s{sBATCH}
    v_add_u32 v{vB}, s3, v{vB}
    v_sub_u32 v{vI}, 0, v{vB}
    v_max_i32 v{vI}, 0, v{vI}
    v_sub_u32 v{vE}, {CAP}, v{vB}
    v_min_i32 v{vE}, v{vE}, v{vC}
    v_lshrrev_b32 v{tA}, 4, v{vW}
    s_lshl_b32 s3, s{sWAVE}, 6
    v_add_u32 v{tA}, s3, v{tA}
    v_mul_u32_u24 v{tA}, {EC}, v{tA}
    v_add3_u32 v{tA}, v{tA}, v{vSt}, v{vI}
    v_mul_u32_u24 v{tA}, 12, v{tA}
    v_add_u32 v{vB}, v{vB}, v{vI}
    v_lshlrev_b32 v{vB}, 2, v{vB}
    v_sub_u32 v{vE}, v{vE}, v{vI}
    K2_BL:
    v_cmp_lt_i32 vcc, 0, v{vE}
    s_and_b64 exec, exec, vcc
    s_cbranch_execz K2_BX
    ds_write_b32 v{vB}, v{tA} offset:{L_DESC}
    v_add_u32 v{vE}, -1, v{vE}
    v_add_u32 v{vB}, 4, v{vB}
    v_add_u32 v{tA}, 12, v{tA}
    s_branch K2_BL
    K2_BX:
    s_mov_b64 exec, -1
    K2_B1:
    s_waitcnt lgkmcnt(0)
    s_barrier
    """)
    stamp(A, 2)
    R0, R1, R2 = T+4, T+5, T+6
    vSO, vP0, vP1, vRXY, vRZ, vOH, vGA, vRK = T+8, T+10, T+11, T+12, T+13, T+14, T+15, T+16
    d, ri, fc, a0, a1, a2, a3, rx, ry, rz = T+18, T+19, T+20, T+21, T+22, T+23, T+24, T+25, T+26, T+27
    A(f"""
    v_mov_b32 v{tA}, {L_CNT+64}
    ds_read_b32 v{tA}, v{tA}
    v_lshrrev_b32 v{tB}, 2, v{vW}
    s_lshl_b32 s3, s{sWAVE}, 8
    v_add_u32 v{tB}, s3, v{tB}                 ; tid*4
    ds_read_b32 v{tC}, v{tB} offset:{L_DESC}
    v_readfirstlane_b32 s{sTOT}, v{tA}
    s_sub_u32 s3, s{sTOT}, s{sBATCH}
    s_min_u32 s3, s3, {CAP}
    s_lshl_b32 s3, s3, 2
    v_cmp_gt_u32 vcc, s3, v{tB}
    s_mov_b64 s[{sEX}:{sEX+1}], vcc
    s_mov_b64 exec, vcc
    buffer_load_dwordx3 v[{R0}:{R2}], v{tC}, s[{REC}:{REC+3}], 0 offen
    s_mov_b64 exec, -1
    """)
    helper("HA", KE * NW, min(NP - (4 * NH if P["STAG"] else 0), KE * NW + RA * NH))
    A(f"s_cmp_eq_u64 s[{sEX}:{sEX+1}], 0\ns_cbranch_scc1 K2_C2")
    def rnd(x):
        A(f"v_cvt_pk_bf16_f32 v{x}, v{x}, v{x}\nv_and_b32 v{x}, 0xffff0000, v{x}")
    def rnd2(x, y):
        A(f"v_cvt_pk_bf16_f32 v{y}, v{x}, v{y}\nv_lshlrev_b32 v{x}, 16, v{y}\nv_and_b32 v{y}, 0xffff0000, v{y}")
    A(f"""
    v_lshrrev_b32 v{vGA}, 16, v{R0}
    v_subrev_u32 v{vGA}, s{sNODE0}, v{vGA}
    v_and_b32 v{vOH}, 15, v{vGA}
    v_lshrrev_b32 v{vGA}, 4, v{vGA}
    v_lshlrev_b32 v{vGA}, 2, v{vGA}
    v_mov_b32 v{vRK}, 1
    s_mov_b64 exec, s[{sEX}:{sEX+1}]
    ds_add_rtn_u32 v{vRK}, v{vGA}, v{vRK} offset:{L_CNT}
    s_mov_b64 exec, -1
    v_lshlrev_b32_e64 v{vOH}, v{vOH}, 1
    v_and_b32 v{vSO}, 0xffff, v{R0}
    v_lshlrev_b32 v{vSO}, 9, v{vSO}
    v_lshlrev_b32 v{rx}, 16, v{R1}
    v_and_b32 v{ry}, 0xffff0000, v{R1}
    v_and_b32 v{rz}, 0xffff0000, v{R2}
    v_mul_f32 v{a0}, v{rx}, v{rx}
    v_mul_f32 v{a1}, v{ry}, v{ry}
    v_mul_f32 v{d}, v{rz}, v{rz}
    """)
    stamp(A, 3)
    rnd2(a0, a1); rnd(d)
    A(f"v_add_f32 v{a0}, v{a0}, v{a1}\nv_add_f32 v{d}, v{a0}, v{d}")
    rnd(d)
    A(f"v_add_f32 v{d}, 0x322bcc77, v{d}")
    rnd(d)
    A(f"v_sqrt_f32 v{d}, v{d}")
    rnd(d)
    A(f"""
    v_rcp_f32 v{ri}, v{d}
    v_mul_f32 v{fc}, 0x40490fdb, v{d}
    v_mul_f32 v{a0}, s{sFREQ}, v{d}
    v_mul_f32 v{a1}, s{sFREQ+1}, v{d}
    v_mul_f32 v{a2}, s{sFREQ+2}, v{d}
    v_mul_f32 v{a3}, s{sFREQ+3}, v{d}
    v_cmp_gt_f32 vcc, 0x40a00000, v{d}
    v_mul_f32 v{d}, 0, v{d}
    """)
    rnd(fc); rnd2(a0, a1); rnd2(a2, a3)
    A(f"v_mul_f32 v{fc}, 0x3e4ccccd, v{fc}")
    rnd(fc)
    for x in (fc, a0, a1, a2, a3):
        A(f"v_mul_f32 v{x}, 0.15915494, v{x}")
    for x in (a0, a1, a2, a3):
        A(f"v_fract_f32 v{x}, v{x}")
    A(f"v_cos_f32 v{fc}, v{fc}")
    for x in (a0, a1, a2, a3):
        A(f"v_sin_f32 v{x}, v{x}")
    rnd(fc); rnd2(a0, a1); rnd2(a2, a3)
    A(f"v_add_f32 v{fc}, 1.0, v{fc}")
    for x in (a0, a1, a2, a3):
        A(f"v_mul_f32 v{x}, v{x}, v{ri}")
    rnd(fc); rnd2(a0, a1); rnd2(a2, a3)
    A(f"v_mul_f32 v{fc}, 0.5, v{fc}\nv_cndmask_b32 v{fc}, v{d}, v{fc}, vcc")
    for x in (rx, ry, rz):
        A(f"v_mul_f32 v{x}, v{x}, v{ri}")
    for x in (a0, a1, a2, a3):
        A(f"v_mul_f32 v{x}, v{x}, v{fc}")
    A(f"""
    v_cvt_pk_bf16_f32 v{vRXY}, v{rx}, v{ry}
    v_cvt_pk_bf16_f32 v{vRZ}, v{rz}, v{rz}
    v_cvt_pk_bf16_f32 v{vP0}, v{a0}, v{a1}
    v_cvt_pk_bf16_f32 v{vP1}, v{a2}, v{a3}
    K2_C2:
    ;@ready v[{R0}:{R2}]
    s_waitcnt lgkmcnt(0)
    s_barrier
    """)
    stamp(A, 4)
    NPH = NP - 4 * NH if P["STAG"] else NP
    helper("HB", KE * NW + RA * NH, NPH)
    if P["STAG"]:
        A(f"""
        s_cmp_eq_u32 s{sFIRST}, 0
        s_cbranch_scc1 K2_HCX
        s_cmp_lt_u32 s{sWAVE}, {H0}
        s_cbranch_scc1 K2_HCX
        s_lshl_b32 s60, s{sWAVE}, 2
        s_add_u32 s60, s60, 4
        """)
        for c in range(4):
            dst_pair()
            if c < 3: A("s_add_u32 s60, s60, 1")
        A("K2_HCX:")
    A(f"""
    v_lshrrev_b32 v{tA}, 3, v{vD1}
    v_lshrrev_b32 v{tB}, 1, v{vD1}
    ds_read_b32 v{tB}, v{tB} offset:{L_CNT}
    v_add_u32 v{tC}, 15, v{tB}
    v_and_b32 v{tC}, -16, v{tC}
    v_mov_b32 v{tD}, v{tC}
    """)
    for m in (1, 2, 4, 8):
        A(f"v_add_u32_dpp v{tD}, v{tD}, v{tD} row_shr:{m} row_mask:0xf bank_mask:0xf")
    A(f"""
    v_sub_u32 v{tD}, v{tD}, v{tC}
    ds_bpermute_b32 v{tC}, v{vGA}, v{tD}
    v_readlane_b32 s{sCNT}, v{tB}, s{sGRP}
    v_readlane_b32 s{sBLK}, v{tD}, s{sGRP}
    v_readlane_b32 s{sCNT12}, v{tB}, 12
    v_readlane_b32 s{sBLK12}, v{tD}, 12
    v_readlane_b32 s18, v{tB}, s{sWAVE}
    v_readlane_b32 s19, v{tD}, s{sWAVE}
    v_add_u32 v{vRK}, v{vRK}, v{tC}
    v_lshrrev_b32 v{tC}, 4, v{vRK}
    v_mul_u32_u24 v{tC}, {BLKB}, v{tC}
    v_and_b32 v{tD}, 15, v{vRK}
    v_lshl_add_u32 v{a0}, v{tD}, 2, v{tC}
    v_lshl_add_u32 v{a1}, v{tD}, 3, v{tC}
    v_lshrrev_b32 v{tD}, 2, v{tD}
    v_lshl_add_u32 v{a2}, v{tD}, 5, v{tC}
    v_and_b32 v{tD}, 3, v{vRK}
    v_lshl_add_u32 v{a2}, v{tD}, 1, v{a2}
    s_mov_b64 exec, s[{sEX}:{sEX+1}]
    ds_write_b32 v{a0}, v{vSO} offset:{L_DESC}
    ds_write_b64 v{a1}, v[{vP0}:{vP1}] offset:{L_DESC+64}
    ds_write_b16 v{a2}, v{vRXY} offset:{L_DESC+192}
    ds_write_b16_d16_hi v{a2}, v{vRXY} offset:{L_DESC+200}
    ds_write_b16 v{a2}, v{vRZ} offset:{L_DESC+208}
    ds_write_b16 v{a2}, v{vOH} offset:{L_DESC+216}
    s_mov_b64 exec, -1
    v_lshrrev_b32 v{tD}, 2, v{tA}
    v_lshlrev_b32 v{a2}, 5, v{tD}
    v_and_b32 v{tD}, 3, v{tA}
    v_lshl_add_u32 v{a2}, v{tD}, 1, v{a2}
    v_mov_b32 v{vSO}, 0x7ffffe00
    v_mov_b32 v{vP0}, 0
    v_mov_b32 v{vP1}, 0
    s_mov_b32 s60, s{sWAVE}
    K2_D0:
    s_and_b32 s3, s18, 15
    s_cbranch_scc0 K2_D1
    s_add_u32 s18, s18, s19
    s_lshr_b32 s18, s18, 4
    s_mul_i32 s18, s18, {BLKB}
    v_lshl_add_u32 v{a0}, v{tA}, 2, s18
    v_add_u32 v{a1}, s18, v{vD1}
    v_add_u32 v{a3}, s18, v{a2}
    v_cmp_le_u32 vcc, s3, v{tA}
    s_mov_b64 exec, vcc
    ds_write_b32 v{a0}, v{vSO} offset:{L_DESC}
    ds_write_b64 v{a1}, v[{vP0}:{vP1}] offset:{L_DESC+64}
    ds_write_b16 v{a3}, v{vP0} offset:{L_DESC+216}
    s_mov_b64 exec, -1
    K2_D1:
    s_mov_b32 s18, s{sCNT12}
    s_mov_b32 s19, s{sBLK12}
    s_add_u32 s60, s60, 1
    s_cmp_eq_u32 s60, {NW}
    s_cbranch_scc1 K2_D0
    """)
    if P["STAG"]:
        A(f"""
        s_cmp_ge_u32 s{sWAVE}, {H0}
        s_cselect_b32 s3, s{sFIRST}, 0
        s_cmp_lg_u32 s3, 0
        s_cbranch_scc1 K2_D2
        s_waitcnt vmcnt(0)
        K2_D2:
        s_mov_b32 s{sFIRST}, 0
        s_waitcnt vmcnt(8) lgkmcnt(0)
        s_barrier
        s_waitcnt vmcnt(0)
        """)
    else:
        A(f"s_mov_b32 s{sFIRST}, 0\ns_waitcnt vmcnt(0) lgkmcnt(0)\ns_barrier")
    stamp(A, 5)
    A(f"""
    K2_G:
    s_add_u32 s{sNHT}, s{sCNT}, 15
    s_lshr_b32 s{sNHT}, s{sNHT}, 4
    s_lshr_b32 s{sBLK}, s{sBLK}, 4
    s_mul_i32 s{sBLK}, s{sBLK}, {BLKB}
    s_add_u32 s{sBLK}, s{sBLK}, {L_DESC}
    """)
    if P["PRIO"]:
        A(f"""
        s_setprio 0
        s_cmp_lt_u32 s{sNHT}, {P['PRIO']}
        s_cbranch_scc1 K2_P0
        s_setprio 1
        s_cmp_eq_u32 s{sNHT}, {P['PRIO']}
        s_cbranch_scc1 K2_P0
        s_setprio 2
        K2_P0:
        """)
    if P.get("FBAL"):
        A(f"s_cmp_eq_u32 s{sGRP}, 12\ns_cselect_b32 s{sNHT}, {P['FBAL']-1}, 3\ns_mul_i32 s{sBLK}, s{sGRP}, {3*BLKB}\ns_add_u32 s{sBLK}, s{sBLK}, {L_DESC}")
    A(f"""
    v_add_u32 v{tA}, s{sBLK}, v{vD0}
    ds_read2_b32 v[{SON}:{SON+1}], v{tA} offset1:8
    s_cmp_eq_u32 s{sINIT}, 0
    s_cbranch_scc1 K2_MAIN
    """)
    for q in range(8):
        A(f"ds_read_b128 v[{T+4*q}:{T+4*q+3}], v{(vS0, vS1)[q&1]} offset:{2048*(q>>1)}")
    def gather():
        if P.get("GPAT"):
            X = T + 8
            A(f"""
            v_bfe_u32 v{X}, v{vW}, 9, 1
            v_lshl_add_u32 v{X}, v{X}, 5, s{sBLK}
            ds_read_b128 v[{X+4}:{X+7}], v{X}
            ds_read_b128 v[{X+8}:{X+11}], v{X} offset:16
            v_and_b32 v{X}, 0x1f0, v{vW}
            s_mov_b32 m0, s{sBUF}
            """)
            for i in range(8): A(f"v_add_u32 v{X+4+i}, v{X+4+i}, v{X}")
            for i in range(8):
                if P["GPAT"] == 1:
                    A(f"buffer_load_dwordx4 v{X+4+i}, s[{SV}:{SV+3}], 0 offen lds")
                else:
                    A(f"s_mov_b32 exec_lo, 0xff\ns_mov_b32 exec_hi, 0xff\nbuffer_load_dwordx4 v{X+4+i}, s[{HT_}:{HT_+3}], 0 offen lds")
                    A(f"s_not_b64 exec, exec\nbuffer_load_dwordx4 v{X+4+i}, s[{SV}:{SV+3}], 0 offen lds")
                A(f"s_addk_i32 m0, 1024")
            A("s_mov_b64 exec, -1")
            return
        A(f"v_add_u32 v{SON}, v{SON}, v{vDA0}\nv_add_u32 v{SON+1}, v{SON+1}, v{vDA1}")
        A(f"s_mov_b32 m0, s{sBUF}")
        order = [(c, i) for c in range(4) for i in range(2)] if P["GORD"] == 0 else [(c, i) for i in range(2) for c in range(4)]
        gfl = ["", " nt", " sc1", " sc0"][P["GFL"]]
        for k, (c, i) in enumerate(order):
            r = HT_ if (c == 0 and not P.get("ONEDMA")) else SV
            A(f"buffer_load_dwordx4 v{SON+i}, s[{r}:{r+3}], 0 offen offset:{128*c}{gfl} lds")
            if k < 7:
                c2, i2 = order[k+1]
                A(f"s_addk_i32 m0, {(c2-c)*1920 + (i2-i)*1024}")
    A(f"""
    s_mov_b32 s{sINIT}, 0
    s_waitcnt lgkmcnt(0)
    s_cmp_eq_u32 s{sNHT}, 0
    s_cbranch_scc1 K2_G1
    """)
    gather()
    A("K2_G1:")
    for q in range(32):
        A(f"v_lshlrev_b32 v{2*q}, 16, v{T+q}\nv_and_b32 v{2*q+1}, 0xffff0000, v{T+q}")
    stamp(A, 7)
    if P.get("STAMP"): A(f"s_mov_b32 s79, s71\ns_add_u32 s78, s78, s{sNHT}")
    A(f"""
    s_cmp_eq_u32 s{sNHT}, 0
    s_cbranch_scc1 K2_NEXT
    s_branch K2_HT
    K2_MAIN:
    s_cmp_eq_u32 s{sNHT}, 0
    s_cbranch_scc1 K2_NEXT
    """)
    gather()
    A("K2_HT:")
    F = T; PHI = T + 16; SA, SB_, SC, SD = T + 28, T + 32, T + 36, T + 40; WR = T + 44
    Q = PHI
    def w2off(ct, o): return L_W2 + 1024 * (ct * 6 + o)
    def ldw(r, ct, o): A(f"ds_read_b128 v[{r}:{r+3}], v{vW} offset:{w2off(ct, o)}")
    def ldwr(ct): A(f"ds_read_b64 v[{WR}:{WR+1}], v{vL8} offset:{L_WR+512*ct}")
    F0, F1, F2, F3 = F, F+4, F+8, F+12
    slots = [F0, F1, SC, SD, SA, SB_]
    A(f"""
    v_add_u32 v{F2}, s{sBLK}, v{vD2}
    v_add_u32 v{F2+1}, s{sBLK}, v{vD1}
    v_add_u32 v{F2+2}, s{sBLK}, v{vD0}
    ds_read_b128 v[{Q}:{Q+3}], v{F2} offset:192
    ds_read_b128 v[{Q+4}:{Q+7}], v{F2} offset:208
    ds_read_b64 v[{PP}:{PP+1}], v{F2+1} offset:64
    ds_read2_b32 v[{SON}:{SON+1}], v{F2+2} offset0:{BLKB//4} offset1:{BLKB//4+8}
    """)
    ldwr(0)
    for o in range(6): ldw(slots[o], 0, o)
    A(f"s_add_u32 s{sBLK}, s{sBLK}, {BLKB}\ns_sub_u32 s{sNHT}, s{sNHT}, 1")
    Sy, S, Sx, S2, Sz = SOP, SOP+2, SOP+4, SOP+6, SOP+8
    A(f"""
    v_pk_lshlrev_b16 v{Q+6}, v{vSH}, v{Q+6}
    v_pk_lshlrev_b16 v{Q+7}, v{vSH}, v{Q+7}
    v_pk_ashrrev_i16 v{Q+6}, s{sF15}, v{Q+6}
    v_pk_ashrrev_i16 v{Q+7}, s{sF15}, v{Q+7}
    v_and_b32 v{S}, 0x3f803f80, v{Q+6}
    v_and_b32 v{S+1}, 0x3f803f80, v{Q+7}
    v_and_b32 v{S2}, 0x3f803f80, v{Q+6}
    v_and_b32 v{S2+1}, 0x3f803f80, v{Q+7}
    """)
    for c, r in enumerate((Sx, Sy, Sz)):
        A(f"v_and_b32 v{r}, v{Q+6}, v{Q+2*c}\nv_and_b32 v{r+1}, v{Q+7}, v{Q+2*c+1}")
    stamp_acc(A, 11, 15)
    A("s_waitcnt vmcnt(0)")
    stamp_acc(A, 12, 15)
    for q in range(8):
        A(f"ds_read_b128 v[{H+4*q}:{H+4*q+3}], v{(vS0, vS1)[q&1]} offset:{2048*(q>>1)}")
    def mm32(dst, a, b, c):
        A(f"v_mfma_f32_16x16x32_bf16 v[{dst}:{dst+3}], v[{a}:{a+3}], v[{b}:{b+3}], " + ("0" if c is None else f"v[{c}:{c+3}]"))
    def mm16(dst, a, b, c):
        A(f"v_mfma_f32_16x16x16_bf16 v[{dst}:{dst+3}], v[{a}:{a+1}], v[{b}:{b+1}], " + ("0" if c is None else f"v[{c}:{c+3}]"))
    def cvt2(d, x):
        A(f"v_cvt_pk_bf16_f32 v{d}, v{x}, v{x+1}\nv_cvt_pk_bf16_f32 v{d+1}, v{x+2}, v{x+3}")
    PV, PSs, PR = PHI, PHI+4, PHI+8
    def prefetch():
        A(f"s_waitcnt lgkmcnt(0)\ns_cmp_eq_u32 s{sNHT}, 0\ns_cbranch_scc1 K2_NOPF")
        gather()
        A("K2_NOPF:")
        stamp_acc(A, 6, 15)
    if P.get("NOCOMP"): prefetch()
    for ct in range(0 if P.get("NOCOMP") else 4):
        nx = ct < 3
        va = lambda c: V + 8*c + 4*(ct >> 1) + 2*(ct & 1)
        for o in range(6):
            ph = (PSs, PV, PR)[o >> 1]
            mm32(ph, H + 4*(o & 1), slots[o], None if (o & 1) == 0 else ph)
            if o == 1:
                A(f"v_mfma_f32_16x16x4_4b_bf16 v[{F}:{F+15}], v[{PP}:{PP+1}], v[{WR}:{WR+1}], 0")
                if ct == 0 and P["PFPOS"] == 0: prefetch()
                if nx: ldwr(ct + 1)
            if o >= 2 and nx: ldw(slots[o], ct + 1, o)
        if ct == 0 and P["PFPOS"] == 1: prefetch()
        mul4(A, PSs, PSs, F0)
        cvt2(F0, PSs)
        mul4(A, PV, PV, F1)
        mm16(4*ct, F0, S, 4*ct)
        mm16(F1, va(0), ID, None)
        mm16(F3, va(1), ID, None)
        mul4(A, PR, PR, F2)
        mm16(F2, va(2), ID, None)
        cvt2(PHI + 6, PR)
        if nx: ldw(F0, ct + 1, 0)
        mul4(A, F1, F1, PV)
        cvt2(PHI + 4, F1)
        if nx: ldw(F1, ct + 1, 1)
        mul4(A, F3, F3, PV)
        mm32(16 + 4*ct, PHI + 4, S, 16 + 4*ct)
        cvt2(PHI + 8, F3)
        mul4(A, F2, F2, PV)
        mm32(32 + 4*ct, PHI + 6, Sy, 32 + 4*ct)
        cvt2(PHI + 4, F2)
        mm32(48 + 4*ct, PHI + 4, S2, 48 + 4*ct)
    stamp_acc(A, 13, 15)
    A(f"""
    s_cmp_lg_u32 s{sNHT}, 0
    s_cbranch_scc1 K2_HT
    K2_NEXT:
    s_add_u32 s{sBATCH}, s{sBATCH}, {CAP}
    s_cmp_ge_u32 s{sBATCH}, s{sTOT}
    s_cbranch_scc1 K2_EPI
    K2_AGAIN:
    s_barrier
    v_lshrrev_b32 v{tA}, 1, v{vD1}
    v_mov_b32 v{tB}, 0
    ds_write_b32 v{tA}, v{tB} offset:{L_CNT}
    s_cmp_ge_u32 s{sWAVE}, 4
    s_cbranch_scc1 K2_B1
    """)
    offs_load()
    A(f"""
    s_waitcnt vmcnt(0)
    s_branch K2_A2
    K2_EPI:
    s_cmp_gt_u32 s{sGRP}, 12
    s_cbranch_scc1 K2_END
    """)
    stamp(A, 8)
    for q in range(8):
        x = T + 4*q
        for i in range(4): A(f"v_cvt_pk_bf16_f32 v{x+i}, v{8*q+2*i}, v{8*q+2*i+1}")
        A(f"ds_write_b128 v{(vS0, vS1)[q&1]}, v[{x}:{x+3}] offset:{2048*(q>>1)}")
    A(f"v_add_u32 v{H}, s{sBUF}, v{vW}")
    for u in range(8):
        A(f"ds_read_b128 v[{4*u}:{4*u+3}], v{H} offset:{1024*u}")
    row_addr()
    A(f"s_lshl_b32 s3, s{sGRP}, 13")
    for u in range(0 if P.get("NOST") else 8):
        A(f"buffer_store_dwordx4 v[{4*u}:{4*u+3}], v{(vR0, vR1)[u&1]}, s[{OUT}:{OUT+3}], s3 offen offset:{128*(u>>1)}" + ["", " nt", " sc1", " sc0 sc1"][P.get("OST", 0)])
    stamp(A, 9)
    A(f"""
    s_cmp_lg_u32 s{sPASS}, 0
    s_cbranch_scc1 K2_FIN
    s_mov_b32 s{sPASS}, 1
    s_mov_b32 s{sINIT}, 1
    s_cmp_gt_u32 s{sTOT}, {CAP}
    s_cbranch_scc1 K2_MULTI
    v_mov_b32 v{tA}, {L_CNT+68}
    v_mov_b32 v{tB}, 1
    s_mov_b64 exec, 1
    ds_add_rtn_u32 v{tB}, v{tA}, v{tB}
    s_mov_b64 exec, -1
    v_readfirstlane_b32 s3, v{tB}
    s_cmp_lg_u32 s3, 0
    s_cbranch_scc1 K2_FIN
    s_mov_b32 s{sGRP}, 12
    s_mov_b32 s{sCNT}, s{sCNT12}
    s_mov_b32 s{sBLK}, s{sBLK12}
    s_mov_b32 s{sBATCH}, 0
    """)
    set_group()
    A(f"""
    s_branch K2_G
    K2_MULTI:
    s_cmp_eq_u32 s{sWAVE}, 0
    s_cselect_b32 s{sGRP}, 12, 15
    s_mov_b32 s{sBATCH}, 0
    """)
    set_group()
    A("s_branch K2_AGAIN\nK2_FIN:")
    if P.get("STAMP"):
        A("s_waitcnt vmcnt(0)")
        stamp(A, 10)
        stamp_out(A, 8, 1, sWAVE, 40)
    A("K2_END:\ns_endpgm")
    return A, 168, (100 if P.get('STAMP') else 84), L_END

def mul4(A, d, a, b):
    for i in range(4): A(f"v_mul_f32 v{d+i}, v{a+i}, v{b+i}")

def emit(path):
    ks = [(NAME1, k1(), (W + NNW + 1, K1T)), (NAME2, k2(), (B, 64 * NW))]
    out = ["; PaiNN message passing: kernel 1 keeps the edges inside the cutoff and bins them by destination,",
           "; kernel 2 gathers source rows and accumulates the messages per destination node with MFMA.",
           "; Generated by a hand-written generator script."]
    for name, (A, vg, sg, lds), (grid, blk) in ks:
        out.append(f"; @launch kernel={name} grid=({grid},1,1) block=({blk},1,1) lds={lds}")
    out.append('.amdgcn_target "amdgcn-amd-amdhsa--gfx950"\n.text')
    for name, (A, vg, sg, lds), _ in ks:
        body, n = A.finish()
        print(name, "instructions", len(A.ins), "hazard states", n, file=sys.stderr)
        out.append(f".globl {name}\n.p2align 8\n.type {name},@function\n{name}:\n{body}")
    out.append('.section .rodata,"a"')
    for name, (A, vg, sg, lds), _ in ks:
        out.append(f""".p2align 6
.amdhsa_kernel {name}
  .amdhsa_next_free_vgpr {vg}
  .amdhsa_next_free_sgpr {sg}
  .amdhsa_accum_offset {vg}
  .amdhsa_group_segment_fixed_size 0
  .amdhsa_kernarg_size 88
  .amdhsa_user_sgpr_count 2
  .amdhsa_user_sgpr_kernarg_segment_ptr 1
  .amdhsa_system_sgpr_workgroup_id_x 1
  .amdhsa_float_denorm_mode_32 3
.end_amdhsa_kernel""")
    open(path, "w").write("\n".join(out) + "\n")

emit(sys.argv[1])
```

```python
import sys
from asmlib import *

P = dict(NB=196, DSTEARLY=2, PF=0, ORD=0, TPF=1, LATE=1, NOH=0, TEARLY=2, HST=2, OST=2, NHELP=3, HELPA=5, PFPOS=0, GORD=0, GFL=0, STAG=1, PRIO=4, TWO=0, RST=0, CPF=1, REMAP=1)
for a in sys.argv[2:]:
    k, v = a.split("="); P[k] = int(v)

N = 50000; E = 800000
EC = 4096; W = (E + EC - 1) // EC
NB = P["NB"]; B = (N + NB - 1) // NB; G = (NB + 15) // 16
assert B <= 256 and G <= 13
K1T = 1024
NT = 53; NNW = (N + 16 * NT - 1) // (16 * NT)
WS_W = 0; WS_WBYTES = 26624
WS_H = 0x2000000
WS_OFF = 0x10000
WS_REC = 0x60000
RECB = EC * 12
def magic(d, lim):
    for S in range(16, 32):
        M = -(-(1 << S) // d)
        if M < (1 << 24) and M * lim < (1 << 32) and all((x * M) >> S == x // d for x in range(lim)):
            return M, S
    raise RuntimeError
BM, BS = magic(NB, N)

NAME1 = "painn_bin_kernel"; NAME2 = "painn_msg_kernel"

def srd(A, d, lo, hi, size):
    A(f"s_mov_b32 s{d}, {lo}\ns_mov_b32 s{d+1}, {hi}\ns_mov_b32 s{d+2}, {size}\ns_mov_b32 s{d+3}, 0x20000")
def srd_off(A, d, base, off, size):
    A(f"s_add_u32 s{d}, s{base}, {off}\ns_addc_u32 s{d+1}, s{base+1}, 0\ns_mov_b32 s{d+2}, {size}\ns_mov_b32 s{d+3}, 0x20000")

WS_STAMP = 0x1000000
STV = [0]
def stamp(A, k):
    if not P.get("STAMP"): return
    if STV[0]: A(f"s_memrealtime s[96:97]\ns_waitcnt lgkmcnt(0)\nv_writelane_b32 v{STV[0]}, s96, {k}")
    else: A(f"s_memrealtime s[96:97]\ns_waitcnt lgkmcnt(0)\ns_mov_b32 s{64+k}, s96")
def stamp_acc(A, k, j):
    if not P.get("STAMP"): return
    A(f"s_memrealtime s[96:97]\ns_waitcnt lgkmcnt(0)\ns_sub_u32 s97, s96, s{64+j}\ns_add_u32 s{64+k}, s{64+k}, s97\ns_mov_b32 s{64+j}, s96")
def stamp_out(A, wsreg, region, wave_sgpr, v):
    if not P.get("STAMP"): return
    A(f"s_mov_b64 exec, -1\ns_lshl_b32 s96, s2, 4\ns_add_u32 s96, s96, s{wave_sgpr}\ns_lshl_b32 s96, s96, 6\ns_add_u32 s96, s96, {WS_STAMP + region * 0x80000}")
    srd_off(A, 92, wsreg, "s96", 64)
    if STV[0]: A(f"v_mov_b32 v{v}, v{STV[0]}")
    else:
        for k in range(16): A(f"v_writelane_b32 v{v}, s{64+k}, {k}")
    A(f"v_mbcnt_lo_u32_b32 v{v+1}, -1, 0\nv_mbcnt_hi_u32_b32 v{v+1}, -1, v{v+1}\nv_lshlrev_b32 v{v+1}, 2, v{v+1}")
    A(f"buffer_store_dword v{v}, v{v+1}, s[92:95], 0 offen")
def stamp_init(A):
    if not P.get("STAMP"): return
    if STV[0]: A(f"v_mov_b32 v{STV[0]}, 0")
    else:
        for k in range(16): A(f"s_mov_b32 s{64+k}, 0")
    stamp(A, 0)

def wave_scan(A, x):
    for m in ("row_shr:1 row_mask:0xf", "row_shr:2 row_mask:0xf", "row_shr:4 row_mask:0xf", "row_shr:8 row_mask:0xf",
              "row_bcast:15 row_mask:0xa", "row_bcast:31 row_mask:0xc"):
        A(f"v_add_u32_dpp v{x}, v{x}, v{x} {m} bank_mask:0xf")

PS = 75024
L1_CNT = 150272; L1_END = L1_CNT + 2048
def k1():
    A = Asm(); STV[0] = 62
    SRC, DST, POS, REC, OFF = 12, 16, 20, 24, 28
    sWAVE, sX5, sVAL = 44, 46, 48
    sM = 50
    sA = 82
    A(f"""
    s_cmp_gt_u32 s2, {W+NNW}
    s_cbranch_scc1 K1_END
    s_load_dwordx4 s[4:7], s[0:1], 8
    s_load_dwordx2 s[8:9], s[0:1], 24
    s_load_dwordx2 s[10:11], s[0:1], 80
    v_lshrrev_b32 v1, 6, v0
    v_and_b32 v2, 63, v0
    v_readfirstlane_b32 s{sWAVE}, v1
    v_lshlrev_b32 v3, 4, v2                    ; lane*16
    """)
    stamp_init(A)
    A(f"""
    s_cmp_ge_u32 s2, {W}
    s_cbranch_scc1 K1_NODE
    v_lshlrev_b32 v1, 4, v0
    v_and_b32 v4, 255, v0
    v_lshlrev_b32 v4, 2, v4
    v_add_u32 v4, {L1_CNT}, v4
    v_mov_b32 v5, 0
    ds_write_b32 v4, v5
    s_lshl_b32 s3, s2, 14
    s_sub_u32 s45, {E*4}, s3
    s_min_u32 s45, s45, {EC*4}
    v_cmp_gt_u32 vcc, s45, v1
    s_mov_b64 s[{sVAL}:{sVAL+1}], vcc
    s_waitcnt lgkmcnt(0)
    """)
    srd_off(A, SRC, 6, "s3", "s45")
    srd_off(A, DST, 8, "s3", "s45")
    srd(A, POS, "s4", "s5", N*6)
    if P["TPF"]:
        A(f"""
        s_lshr_b32 s3, s2, 3
        s_min_u32 s3, s3, 23
        s_mul_i32 s3, s3, {98*128}
        v_lshlrev_b32 v46, 6, v0
        v_cmp_gt_u32 vcc, {98*2}, v0
        s_mov_b64 exec, vcc
        buffer_load_dword v45, v46, s[{POS}:{POS+3}], s3 offen
        ;@ready v45
        s_mov_b64 exec, -1
        """)
    A(f"""
    buffer_load_dwordx4 v[4:7], v1, s[{SRC}:{SRC+3}], 0 offen
    buffer_load_dwordx4 v[8:11], v1, s[{DST}:{DST+3}], 0 offen
    s_cmp_lt_u32 s{sWAVE}, 9
    s_cselect_b64 s[{sX5}:{sX5+1}], -1, 1
    s_cmp_eq_u32 s{sWAVE}, 9
    s_cselect_b32 s{sX5}, 0x1ffff, s{sX5}
    s_cmp_le_u32 s{sWAVE}, 9
    s_cselect_b32 s45, {16*1024}, 0
    """)
    def piece(p):
        A(f"s_lshl_b32 s3, s{sWAVE}, 10\ns_add_u32 m0, s3, {(p&1)*PS}\ns_add_u32 s3, s3, {p*PS}")
        for r in range(5):
            if r == 4: A(f"s_mov_b64 exec, s[{sX5}:{sX5+1}]")
            A(f"buffer_load_dwordx4 v3, s[{POS}:{POS+3}], s3 offen lds")
            if r < 3: A(f"s_add_u32 m0, m0, {16*1024}\ns_add_u32 s3, s3, {16*1024}")
            if r == 3: A(f"s_add_u32 m0, m0, s45\ns_add_u32 s3, s3, s45")
        A("s_mov_b64 exec, -1")
    def lookup(p):
        for j in range(8):
            hi, od = f"s[{sM+4*j}:{sM+4*j+1}]", f"s[{sM+4*j+2}:{sM+4*j+3}]"
            A([f"s_nor_b64 exec, {hi}, {od}", f"s_andn2_b64 exec, {od}, {hi}", f"s_andn2_b64 exec, {hi}, {od}", f"s_and_b64 exec, {hi}, {od}"][p])
            A(f"ds_read2_b32 v[{12+2*j}:{13+2*j}], v{28+j} offset1:1")
            A(f";@ready v[{12+2*j}:{13+2*j}]")
        A("s_mov_b64 exec, -1")
    TE = P["TEARLY"]
    for p in range(TE): piece(p)
    A(f"s_mul_i32 s3, s2, {RECB}\ns_add_u32 s3, s3, {WS_REC}")
    srd_off(A, REC, 10, "s3", RECB)
    A(f"s_lshl_b32 s3, s2, 10\ns_add_u32 s3, s3, {WS_OFF}")
    srd_off(A, OFF, 10, "s3", B*4)
    A(f"s_waitcnt vmcnt({5*TE})\n;@ready v[4:11]")
    stamp(A, 1)
    if TE == 0: piece(0)
    for j in range(8):
        A(f"""
        v_mul_u32_u24 v{28+j}, 6, v{4+j}
        v_cmp_lt_u32 vcc, {2*PS//6-1}, v{4+j}
        v_and_b32 v{28+j}, -4, v{28+j}
        v_subrev_u32 v36, {2*PS}, v{28+j}
        s_mov_b64 s[{sM+4*j}:{sM+4*j+1}], vcc
        v_min_u32 v{28+j}, v{28+j}, v36
        v_cmp_lt_u32 vcc, {PS-1}, v{28+j}
        s_mov_b64 s[{sM+4*j+2}:{sM+4*j+3}], vcc
        """)
    if TE < 2: piece(1)
    if P["TWO"]:
        A("s_waitcnt vmcnt(0)\ns_barrier")
        stamp(A, 2)
        lookup(0); lookup(1)
        A("s_waitcnt lgkmcnt(0)\ns_barrier")
        stamp(A, 8)
        piece(2); piece(3)
        A("s_waitcnt vmcnt(0)\ns_barrier")
        stamp(A, 4)
        lookup(2); lookup(3)
    else:
        A("s_waitcnt vmcnt(5)\ns_barrier")
        stamp(A, 2)
        lookup(0)
        A("s_waitcnt lgkmcnt(0)\ns_barrier")
        piece(2)
        A("s_waitcnt vmcnt(5)\ns_barrier")
        stamp(A, 8)
        lookup(1)
        A("s_waitcnt lgkmcnt(0)\ns_barrier")
        piece(3)
        A("s_waitcnt vmcnt(5)\ns_barrier")
        stamp(A, 9)
        lookup(2)
        A("s_waitcnt vmcnt(0)\ns_barrier")
        stamp(A, 4)
        lookup(3)
    A("v_mov_b32 v63, 1")
    for j in range(4):
        s_, d = 4+j, 8+j
        A(f"""
        v_mul_u32_u24 v{56+j}, {BM}, v{d}
        v_lshl_or_b32 v{36+4*j}, v{d}, 16, v{s_}
        v_lshrrev_b32 v{56+j}, {BS-2}, v{56+j}
        v_lshlrev_b32 v{s_}, 4, v{s_}
        v_and_b32 v{56+j}, -4, v{56+j}
        v_lshlrev_b32 v{d}, 4, v{d}
        v_add_u32 v{56+j}, {L1_CNT}, v{56+j}
        """)
    A("s_waitcnt lgkmcnt(0)")
    thr = 0x41c9999a
    for j in range(4):
        s_, d, ps, pd = 4+j, 8+j, 12+2*j, 20+2*j
        r0, r1, r2, rk = 36+4*j, 37+4*j, 38+4*j, 39+4*j
        t = 52
        A(f"""
        v_alignbit_b32 v{ps}, v{ps+1}, v{ps}, v{s_}
        v_alignbit_b32 v{pd}, v{pd+1}, v{pd}, v{d}
        v_lshrrev_b32 v{ps+1}, v{s_}, v{ps+1}
        v_lshrrev_b32 v{pd+1}, v{d}, v{pd+1}
        v_lshlrev_b32 v{t}, 16, v{ps}
        v_lshlrev_b32 v{t+1}, 16, v{pd}
        v_and_b32 v{ps}, 0xffff0000, v{ps}
        v_and_b32 v{pd}, 0xffff0000, v{pd}
        v_lshlrev_b32 v{ps+1}, 16, v{ps+1}
        v_lshlrev_b32 v{pd+1}, 16, v{pd+1}
        v_sub_f32 v{t}, v{t}, v{t+1}
        v_sub_f32 v{t+1}, v{ps}, v{pd}
        v_sub_f32 v{t+2}, v{ps+1}, v{pd+1}
        v_mul_f32 v{t+3}, v{t}, v{t}
        v_fmac_f32 v{t+3}, v{t+1}, v{t+1}
        v_fmac_f32 v{t+3}, v{t+2}, v{t+2}
        v_subrev_u32 v{t+3}, {thr:#x}, v{t+3}
        v_cmp_le_u32 vcc, {0x7f800000-thr:#x}, v{t+3}
        v_cvt_pk_bf16_f32 v{r1}, v{t}, v{t+1}
        v_cvt_pk_bf16_f32 v{r2}, v{t+2}, v{t+2}
        s_and_b64 s[{sA+2*j}:{sA+2*j+1}], vcc, s[{sVAL}:{sVAL+1}]
        s_mov_b64 exec, s[{sA+2*j}:{sA+2*j+1}]
        ds_add_rtn_u32 v{rk}, v{56+j}, v63
        s_mov_b64 exec, -1
        """)
    stamp(A, 5)
    A("s_waitcnt lgkmcnt(0)\ns_barrier")
    A(f"""
    v_add_u32 v1, {L1_CNT}, v3
    ds_read_b128 v[4:7], v1
    v_add_u32 v9, v4, v5
    v_add_u32 v10, v9, v6
    v_add_u32 v11, v10, v7
    v_mov_b32 v12, v11
    """)
    wave_scan(A, 12)
    A(f"""
    v_sub_u32 v12, v12, v11
    v_add_u32 v13, v12, v4
    v_add_u32 v14, v12, v9
    v_add_u32 v15, v12, v10
    ds_write_b128 v1, v[12:15] offset:1024
    """)
    for j in range(4):
        A(f"ds_read_b32 v{16+j}, v{56+j} offset:1024")
    rst = ["", " nt", " sc1", " sc0 sc1"][P["RST"]]
    A(f"""
    s_cmp_lg_u32 s{sWAVE}, 0
    s_cbranch_scc1 K1_NOOFF
    v_lshl_or_b32 v4, v4, 16, v12
    v_lshl_or_b32 v5, v5, 16, v13
    v_lshl_or_b32 v6, v6, 16, v14
    v_lshl_or_b32 v7, v7, 16, v15
    buffer_store_dwordx4 v[4:7], v3, s[{OFF}:{OFF+3}], 0 offen{rst}
    K1_NOOFF:
    """)
    for j in range(4):
        r0 = 36+4*j
        A(f"""
        v_add_u32 v{16+j}, v{16+j}, v{r0+3}
        v_mul_u32_u24 v{16+j}, 12, v{16+j}
        s_mov_b64 exec, s[{sA+2*j}:{sA+2*j+1}]
        buffer_store_dwordx3 v[{r0}:{r0+2}], v{16+j}, s[{REC}:{REC+3}], 0 offen{rst}
        s_mov_b64 exec, -1
        """)
    stamp(A, 6)
    if P.get("STAMP"):
        A("s_waitcnt vmcnt(0)")
        stamp(A, 7)
        stamp_out(A, 10, 0, sWAVE, 4)
    A("s_endpgm")

    SVR, HO, W1 = 12, 16, 20
    LT = 8192
    vR0, vR1, vS0, vS1, vL = 8, 9, 10, 11, 12
    SB = 16; WA = 64; D1 = 96; E1 = 112
    A(f"""
    K1_NODE:
    s_cmp_eq_u32 s2, {W+NNW}
    s_cbranch_scc1 K1_PREP
    s_load_dwordx2 s[90:91], s[0:1], 0
    s_load_dwordx2 s[92:93], s[0:1], 40
    s_sub_u32 s3, s2, {W}
    s_mul_i32 s3, s3, {NT*16}
    s_sub_u32 s45, {N}, s3
    s_min_u32 s45, s45, {NT*16}
    s_lshl_b32 s45, s45, 9
    s_lshl_b32 s3, s3, 9
    v_and_b32 v4, 7, v2
    v_lshrrev_b32 v5, 4, v2
    v_xor_b32 v4, v4, v5
    v_lshlrev_b32 v4, 4, v4
    v_lshrrev_b32 v6, 3, v2
    v_lshl_add_u32 v{vR0}, v6, 9, v4
    v_xor_b32 v{vR1}, 64, v{vR0}
    v_add_u32 v{vR1}, 4096, v{vR1}
    v_lshl_add_u32 v14, v6, 7, v4
    v_xor_b32 v15, 64, v14
    v_bfe_u32 v7, v2, 4, 1
    s_and_b32 s46, s{sWAVE}, 1
    s_lshl_b32 s46, s46, 1
    v_or_b32 v7, s46, v7
    v_lshlrev_b32 v7, 5, v7
    v_xor_b32 v7, v7, v3
    s_waitcnt lgkmcnt(0)
    """)
    srd_off(A, SVR, 90, "s3", "s45")
    A(f"s_lshr_b32 s3, s3, 2\ns_lshr_b32 s45, s45, 2\ns_add_u32 s3, s3, {WS_H}")
    srd_off(A, HO, 10, "s3", "s45")
    srd(A, W1, "s92", "s93", 8192)
    A(f"""
    s_cmp_lt_u32 s{sWAVE}, 8
    s_cselect_b64 exec, -1, 0
    s_lshl_b32 s3, s{sWAVE}, 10
    s_mov_b32 m0, s3
    buffer_load_dwordx4 v7, s[{W1}:{W1+3}], s3 offen lds
    s_mov_b64 exec, -1
    s_lshl_b32 s46, s{sWAVE}, 11
    s_add_u32 s46, s46, {LT}
    s_lshl_b32 s47, s{sWAVE}, 13
    """)
    def tile_dma(k):
        A(f"""
        s_add_u32 m0, s46, {32768*k}
        s_add_u32 s3, s47, {16*8192*k}
        buffer_load_dwordx4 v{vR0}, s[{SVR}:{SVR+3}], s3 offen lds
        s_add_u32 m0, m0, 1024
        buffer_load_dwordx4 v{vR1}, s[{SVR}:{SVR+3}], s3 offen lds
        """)
    tile_dma(0)
    PF = 0
    A(f"""
    v_bfe_u32 v4, v2, 1, 3
    v_xor_b32 v4, v4, v5
    v_and_b32 v6, 15, v2
    v_lshlrev_b32 v6, 7, v6
    v_lshl_add_u32 v4, v4, 4, v6
    v_add_u32 v{vS0}, s46, v4
    v_add_u32 v{vL}, s46, v3
    v_bfe_u32 v57, v2, 2, 2
    v_lshl_add_u32 v58, v5, 3, v57             ; row 8g+r
    v_lshlrev_b32 v58, 7, v58
    v_and_b32 v59, 3, v2
    v_lshl_add_u32 v58, v59, 3, v58
    v_lshrrev_b32 v57, 1, v57
    v_and_b32 v56, 1, v5
    v_lshl_or_b32 v57, v56, 1, v57
    v_lshlrev_b32 v57, 5, v57
    v_xor_b32 v58, v58, v57
    v_xor_b32 v59, 32, v58
    v_xor_b32 v60, 64, v58
    v_xor_b32 v61, 96, v58
    s_waitcnt vmcnt(2)
    s_barrier
    """)
    for k in range(1, 4): tile_dma(k)
    for u in range(4):
        for t in range(2):
            for hf in range(2):
                x = WA + 8*u + 4*t + 2*hf
                A(f"ds_read_b64_tr_b16 v[{x}:{x+1}], v{58+u} offset:{4096*t+512*hf}")
    stamp(A, 1)
    A(f"""
    s_mov_b32 s48, s{sWAVE}
    K1_TILE:
    v_xor_b32 v{vS1}, 64, v{vS0}
    s_waitcnt vmcnt({6+PF})
    ds_read_b128 v[{SB}:{SB+3}], v{vS0}
    ds_read_b128 v[{SB+4}:{SB+7}], v{vS1}
    """)
    for u in range(4):
        for t in range(2):
            x = WA + 8*u + 4*t
            A(f"v_mfma_f32_16x16x32_bf16 v[{D1+4*u}:{D1+4*u+3}], v[{x}:{x+3}], v[{SB+4*t}:{SB+4*t+3}], " + ("0" if t == 0 else f"v[{D1+4*u}:{D1+4*u+3}]"))
    for u in range(4):
        x = D1 + 4*u; e = E1 + 4*u
        A(f"v_cvt_pk_bf16_f32 v{x+1}, v{x}, v{x+1}\nv_cvt_pk_bf16_f32 v{x+3}, v{x+2}, v{x+3}")
        A(f"v_lshlrev_b32 v{x}, 16, v{x+1}\nv_and_b32 v{x+1}, 0xffff0000, v{x+1}\nv_lshlrev_b32 v{x+2}, 16, v{x+3}\nv_and_b32 v{x+3}, 0xffff0000, v{x+3}")
        for i in range(4): A(f"v_mul_f32 v{e+i}, 0xbfb8aa3b, v{x+i}")
        for i in range(4): A(f"v_exp_f32 v{e+i}, v{e+i}")
        for i in range(4): A(f"v_add_f32 v{e+i}, 1.0, v{e+i}")
        for i in range(4): A(f"v_rcp_f32 v{e+i}, v{e+i}")
        for i in range(4): A(f"v_mul_f32 v{e+i}, v{e+i}, v{x+i}")
        A(f"v_cvt_pk_bf16_f32 v{SB+2*u}, v{e}, v{e+1}\nv_cvt_pk_bf16_f32 v{SB+2*u+1}, v{e+2}, v{e+3}")
    hst = ["", " nt", " sc1", " sc0 sc1"][P["HST"]]
    A(f"""
    ds_write_b128 v{vS0}, v[{SB}:{SB+3}]
    ds_write_b128 v{vS1}, v[{SB+4}:{SB+7}]
    ds_read_b128 v[{SB+8}:{SB+11}], v{vL}
    ds_read_b128 v[{SB+12}:{SB+15}], v{vL} offset:1024
    v_add_u32 v{vS0}, 0x8000, v{vS0}
    v_add_u32 v{vL}, 0x8000, v{vL}
    s_lshl_b32 s47, s48, 11
    buffer_store_dwordx4 v[{SB+8}:{SB+11}], v14, s[{HO}:{HO+3}], s47 offen{hst}
    buffer_store_dwordx4 v[{SB+12}:{SB+15}], v15, s[{HO}:{HO+3}], s47 offen offset:1024{hst}
    s_add_u32 s48, s48, 16
    s_cmp_lt_u32 s48, {NT}
    s_cbranch_scc1 K1_TILE
    """)
    if P["CPF"]:
        A(f"""
        s_cmp_lt_u32 s{sWAVE}, 14
        s_cbranch_scc1 K1_NOCPF
        s_getpc_b64 s[24:25]
        K1_PC:
        s_add_u32 s24, s24, {NAME2}-K1_PC
        s_addc_u32 s25, s25, 0
        s_mov_b32 s26, K2_END-{NAME2}
        s_mov_b32 s27, 0x20000
        v_and_b32 v4, 127, v0
        v_lshlrev_b32 v4, 6, v4
        buffer_load_dword v5, v4, s[24:27], 0 offen
        K1_NOCPF:
        """)
    stamp(A, 6)
    if P.get("STAMP"):
        A("s_waitcnt vmcnt(0)")
        stamp(A, 7)
        stamp_out(A, 10, 0, sWAVE, 4)
    A("s_endpgm")

    A(f"""
    K1_PREP:
    s_load_dwordx4 s[12:15], s[0:1], 48
    v_bfe_u32 v1, v0, 2, 2
    v_and_b32 v4, 3, v0
    v_lshlrev_b32 v4, 1, v4
    v_lshl_add_u32 v1, v1, 4, v4
    v_lshrrev_b32 v6, 4, v2
    s_waitcnt lgkmcnt(0)
    """)
    srd(A, 24, "s12", "s13", 64*192*2)
    srd(A, 28, "s14", "s15", 4*192*2)
    srd_off(A, 32, 10, WS_W, WS_WBYTES)
    A(f"""
    s_mov_b32 s3, s{sWAVE}
    v_mul_u32_u24 v4, {4*384}, v6
    v_add_u32 v4, v4, v1
    v_add_u32 v5, {16*384}, v4
    K1_PW2:
    s_and_b32 s36, s3, 1
    s_lshr_b32 s37, s3, 1
    s_mul_i32 s38, s37, 43
    s_lshr_b32 s38, s38, 7
    s_mul_i32 s39, s38, 3
    s_sub_u32 s39, s37, s39
    s_mul_i32 s36, s36, {32*384}
    s_lshl_b32 s39, s39, 7
    s_add_u32 s36, s36, s39
    s_lshr_b32 s39, s38, 1
    s_lshl_b32 s39, s39, 6
    s_add_u32 s36, s36, s39
    s_and_b32 s39, s38, 1
    s_lshl_b32 s39, s39, 3
    s_add_u32 s36, s36, s39
    """)
    for j in range(8):
        A(f"buffer_load_ushort v{8+j}, v{4+(j>>2)}, s[24:27], s36 offen offset:{384*(j&3)}")
    A(f"""
    s_lshl_b32 s36, s3, 10
    v_lshl_or_b32 v16, v9, 16, v8
    v_lshl_or_b32 v17, v11, 16, v10
    v_lshl_or_b32 v18, v13, 16, v12
    v_lshl_or_b32 v19, v15, 16, v14
    buffer_store_dwordx4 v[16:19], v3, s[32:35], s36 offen
    s_add_u32 s3, s3, 16
    s_cmp_lt_u32 s3, 24
    s_cbranch_scc1 K1_PW2
    s_cmp_ge_u32 s3, 28
    s_cbranch_scc1 K1_END
    s_sub_u32 s3, s3, 24
    s_lshr_b32 s36, s3, 1
    s_lshl_b32 s36, s36, 6
    s_and_b32 s37, s3, 1
    s_lshl_b32 s37, s37, 3
    s_add_u32 s36, s36, s37
    v_min_u32 v6, 2, v6
    v_lshl_add_u32 v4, v6, 7, v1
    """)
    for j in range(4):
        A(f"buffer_load_ushort v{8+j}, v4, s[28:31], s36 offen offset:{384*j}")
    A(f"""
    s_lshl_b32 s36, s3, 9
    s_add_u32 s36, s36, 24576
    v_lshlrev_b32 v3, 3, v2
    v_lshl_or_b32 v8, v9, 16, v8
    v_lshl_or_b32 v9, v11, 16, v10
    buffer_store_dwordx2 v[8:9], v3, s[32:35], s36 offen
    K1_END:
    s_endpgm
    """)
    return A, 128, 100, L1_END

NW = 12
L_W2 = 0; L_WR = 24576
L_DESC = 26624; NBLK = 64; BLKB = 320
L_CNT = L_DESC + NBLK * BLKB
L_BUF = L_CNT + 256
BUFB = 8192
L_END = L_BUF + G * BUFB
CAP = min(NBLK * 16 - G * 15, NW * 64)
assert L_END <= 163840 and G == 13 and L_BUF % 256 == 0

def k2():
    A = Asm(); STV[0] = 0
    SV, DR, OUT, OFF, REC, WW, HT_ = 20, 24, 28, 32, 36, 40, 80
    sWAVE, sBUF, sTOT, sBATCH, sWBASE, sCNT, sBLK, sNHT = 44, 45, 46, 47, 48, 49, 50, 51
    sHI, sF15, sGRP, sPASS, sNODE0, sFIRST = 52, 53, 54, 55, 56, 57
    sEX = 58
    sINIT, sCNT12, sBLK12 = 61, 62, 63
    sFREQ = 14
    vW, vS0, vS1, vSH = 64, 65, 66, 67
    H = 68; V = 76; SOP = 100; PP = 110; ID = 112
    SON0, vDA0, SON1, vDA1, vL8, vD0, vD1, vD2 = 114, 115, 116, 117, 118, 119, 120, 121
    T = 122
    A(f"""
    s_cmp_ge_u32 s2, {B}
    s_cbranch_scc1 K2_END
    """)
    if P["REMAP"]:
        A("s_and_b32 s3, s2, 7\ns_lshl_b32 s3, s3, 5\ns_lshr_b32 s2, s2, 3\ns_or_b32 s2, s2, s3")
    stamp_init(A)
    tA, tB, tC, tD = T, T+1, T+2, T+3
    vO = T + 4
    vR0, vR1 = T + 40, T + 41
    A(f"""
    s_load_dwordx2 s[8:9], s[0:1], 80
    s_load_dwordx2 s[4:5], s[0:1], 0
    s_load_dwordx2 s[6:7], s[0:1], 64
    s_load_dwordx2 s[10:11], s[0:1], 32
    v_lshrrev_b32 v1, 6, v0
    v_and_b32 v2, 63, v0
    v_readfirstlane_b32 s{sWAVE}, v1
    v_lshlrev_b32 v{vW}, 4, v2
    v_mov_b32 v3, 0
    v_lshlrev_b32 v4, 2, v2
    ds_write_b32 v4, v3 offset:{L_CNT}
    s_mul_i32 s{sNODE0}, s2, {NB}
    s_mov_b32 s{sBATCH}, 0
    s_mov_b32 s{sFIRST}, 1
    s_mov_b32 s{sINIT}, 1
    s_mov_b32 s{sPASS}, 0
    s_mov_b32 s{sGRP}, s{sWAVE}
    s_mov_b32 s{sHI}, 0xffff0000
    s_mov_b32 s{sF15}, 0x000f000f
    s_waitcnt lgkmcnt(0)
    s_load_dwordx2 s[12:13], s[10:11], 0
    """)
    srd_off(A, OFF, 8, WS_OFF, W * 1024)
    def offs_load():
        A(f"""
        s_lshl_b32 s3, s{sWAVE}, 16
        s_lshl_b32 s60, s2, 2
        s_add_u32 s3, s3, s60
        v_lshlrev_b32 v{tA}, 6, v{vW}
        buffer_load_dword v{vO}, v{tA}, s[{OFF}:{OFF+3}], s3 offen
        """)
    offs_load()
    A("s_barrier")
    srd_off(A, WW, 8, WS_W, WS_WBYTES)
    for r in range(3):
        if r < 2: A(f"s_add_u32 s3, s{sWAVE}, {r*NW}\ns_lshl_b32 s3, s3, 10\ns_mov_b32 m0, s3")
        else: A(f"s_cmp_lt_u32 s{sWAVE}, 2\ns_cselect_b64 exec, -1, 1\ns_cselect_b32 s60, {NW*1024}, 0\ns_add_u32 s3, s3, s60\ns_mov_b32 m0, s3")
        A(f"buffer_load_dwordx4 v{vW}, s[{WW}:{WW+3}], s3 offen lds")
    A(f"""
    s_mov_b64 exec, -1
    s_add_u32 s60, s{sNODE0}, {NB}
    s_min_u32 s60, s60, {N}
    s_sub_u32 s60, s60, s{sNODE0}
    s_lshl_b32 s60, s60, 9
    s_lshl_b32 s3, s{sNODE0}, 9
    """)
    srd_off(A, DR, 4, "s3", "s60")
    srd_off(A, OUT, 6, "s3", "s60")
    A(f"""
    v_and_b32 v5, 7, v2
    v_lshrrev_b32 v6, 4, v2
    v_xor_b32 v5, v5, v6
    v_lshlrev_b32 v{vDA0}, 4, v5
    v_xor_b32 v{vDA1}, 64, v{vDA0}
    v_lshrrev_b32 v5, 3, v2
    v_lshlrev_b32 v{vD0}, 2, v5
    """)
    def row_addr():
        A(f"""
        v_lshl_add_u32 v{vR0}, v{vD0}, 7, v{vDA0}
        v_lshl_add_u32 v{vR1}, v{vD0}, 7, v{vDA1}
        v_add_u32 v{vR1}, 4096, v{vR1}
        """)
    def dst_pair():
        if P["STAG"]:
            A(f"s_sub_u32 s3, s60, 4\ns_cselect_b32 s3, {4*12}, s3\ns_lshr_b32 s3, s3, 2")
        else: A("s_lshr_b32 s3, s60, 2")
        A(f"""
        s_lshl_b32 s3, s3, 13
        s_and_b32 s18, s60, 3
        s_lshl_b32 s19, s18, 11
        s_add_u32 s19, s19, s3
        s_add_u32 m0, s19, {L_BUF}
        s_lshl_b32 s18, s18, 7
        s_add_u32 s3, s3, s18
        buffer_load_dwordx4 v{vR0}, s[{DR}:{DR+3}], s3 offen lds
        s_add_u32 m0, m0, 1024
        s_nop 0
        buffer_load_dwordx4 v{vR1}, s[{DR}:{DR+3}], s3 offen lds
        """)
    row_addr()
    KE = P["DSTEARLY"]; NP = 4 * G
    for r in range(KE):
        A(f"s_add_u32 s60, s{sWAVE}, {r*NW}")
        dst_pair()
    NH = P["NHELP"]; H0 = NW - NH
    rest = NP - KE * NW
    RA = min(P["HELPA"], (rest + NH - 1) // NH)
    def helper(tag, lo, hi):
        if lo >= hi: return
        A(f"""
        s_cmp_eq_u32 s{sFIRST}, 0
        s_cbranch_scc1 K2_{tag}X
        s_cmp_lt_u32 s{sWAVE}, {H0}
        s_cbranch_scc1 K2_{tag}X
        s_add_u32 s60, s{sWAVE}, {lo - H0}
        K2_{tag}L:
        s_cmp_ge_u32 s60, {hi}
        s_cbranch_scc1 K2_{tag}X
        """)
        dst_pair()
        A(f"s_add_u32 s60, s60, {NH}\ns_branch K2_{tag}L\nK2_{tag}X:")
    srd_off(A, REC, 8, WS_REC, W * RECB)
    srd_off(A, HT_, 8, WS_H, N)
    A(f"s_or_b32 s{HT_+1}, s{HT_+1}, {128 << 16:#x}")
    srd(A, SV, "s4", "s5", N)
    A(f"s_or_b32 s{SV+1}, s{SV+1}, {512 << 16:#x}")
    def set_group():
        A(f"""
        s_min_u32 s{sBUF}, s{sGRP}, {G-1}
        s_lshl_b32 s{sBUF}, s{sBUF}, 13
        s_add_u32 s{sBUF}, s{sBUF}, {L_BUF}
        v_bfe_u32 v{tA}, v{vW}, 5, 3
        v_lshrrev_b32 v{tB}, 8, v{vW}
        v_xor_b32 v{tA}, v{tA}, v{tB}
        v_lshlrev_b32 v{tB}, 4, v{vD1}
        v_lshl_add_u32 v{tA}, v{tA}, 4, v{tB}
        v_add_u32 v{vS0}, s{sBUF}, v{tA}
        v_xor_b32 v{vS1}, 64, v{vS0}
        """)
    A(f"""
    v_and_b32 v5, 15, v2
    v_lshlrev_b32 v{vD1}, 3, v5
    v_sub_u32 v{vSH}, 15, v5
    v_mul_u32_u24 v{vSH}, 0x10001, v{vSH}
    v_lshlrev_b32 v{vD2}, 5, v6
    v_lshlrev_b32 v{vL8}, 3, v2
    v_lshlrev_b32 v6, 2, v6
    v_sub_u32 v5, v5, v6
    v_mov_b32 v7, 0x3f80
    v_mov_b32 v8, 0x3f800000
    v_cmp_eq_u32 vcc, 0, v5
    v_cndmask_b32 v{ID}, 0, v7, vcc
    v_cmp_eq_u32 vcc, 1, v5
    v_cndmask_b32 v{ID}, v{ID}, v8, vcc
    v_cmp_eq_u32 vcc, 2, v5
    v_cndmask_b32 v{ID+1}, 0, v7, vcc
    v_cmp_eq_u32 vcc, 3, v5
    v_cndmask_b32 v{ID+1}, v{ID+1}, v8, vcc
    """)
    set_group()
    A(f"""
    s_waitcnt lgkmcnt(0)
    s_lshl_b32 s{sFREQ}, s12, 16
    s_and_b32 s{sFREQ+1}, s12, s{sHI}
    s_lshl_b32 s{sFREQ+2}, s13, 16
    s_and_b32 s{sFREQ+3}, s13, s{sHI}
    s_cmp_ge_u32 s{sWAVE}, 4
    s_cbranch_scc1 K2_B1
    s_waitcnt vmcnt({3+2*KE})
    K2_A2:
    """)
    stamp(A, 1)
    vC, vSt, vB, vI, vE = T+5, T+6, T+7, T+8, T+9
    A(f"""
    v_lshrrev_b32 v{vC}, 16, v{vO}
    v_and_b32 v{vSt}, 0xffff, v{vO}
    v_mov_b32 v{vB}, v{vC}
    """)
    wave_scan(A, vB)
    A(f"""
    s_cmp_eq_u32 s{sFIRST}, 0
    s_cbranch_scc1 K2_B0
    v_readlane_b32 s3, v{vB}, 63
    v_mov_b32 v{tA}, {L_CNT+64}
    v_mov_b32 v{tB}, s3
    s_mov_b64 exec, 1
    ds_add_rtn_u32 v{tB}, v{tA}, v{tB}
    s_mov_b64 exec, -1
    v_readfirstlane_b32 s{sWBASE}, v{tB}
    K2_B0:
    v_sub_u32 v{vB}, v{vB}, v{vC}
    s_sub_u32 s3, s{sWBASE}, s{sBATCH}
    v_add_u32 v{vB}, s3, v{vB}
    v_sub_u32 v{vI}, 0, v{vB}
    v_max_i32 v{vI}, 0, v{vI}
    v_sub_u32 v{vE}, {CAP}, v{vB}
    v_min_i32 v{vE}, v{vE}, v{vC}
    v_lshrrev_b32 v{tA}, 4, v{vW}
    s_lshl_b32 s3, s{sWAVE}, 6
    v_add_u32 v{tA}, s3, v{tA}
    v_mul_u32_u24 v{tA}, {EC}, v{tA}
    v_add3_u32 v{tA}, v{tA}, v{vSt}, v{vI}
    v_mul_u32_u24 v{tA}, 12, v{tA}
    v_add_u32 v{vB}, v{vB}, v{vI}
    v_lshlrev_b32 v{vB}, 2, v{vB}
    v_sub_u32 v{vE}, v{vE}, v{vI}
    K2_BL:
    v_cmp_lt_i32 vcc, 0, v{vE}
    s_and_b64 exec, exec, vcc
    s_cbranch_execz K2_BX
    ds_write_b32 v{vB}, v{tA} offset:{L_DESC}
    v_add_u32 v{vE}, -1, v{vE}
    v_add_u32 v{vB}, 4, v{vB}
    v_add_u32 v{tA}, 12, v{tA}
    s_branch K2_BL
    K2_BX:
    s_mov_b64 exec, -1
    K2_B1:
    s_waitcnt lgkmcnt(0)
    s_barrier
    """)
    stamp(A, 2)
    R0, R1, R2 = T+4, T+5, T+6
    vSO, vP0, vP1, vRXY, vRZ, vOH, vGA, vRK = T+8, T+10, T+11, T+12, T+13, T+14, T+15, T+16
    d, ri, fc, a0, a1, a2, a3, rx, ry, rz = T+18, T+19, T+20, T+21, T+22, T+23, T+24, T+25, T+26, T+27
    A(f"""
    v_mov_b32 v{tA}, {L_CNT+64}
    ds_read_b32 v{tA}, v{tA}
    v_lshrrev_b32 v{tB}, 2, v{vW}
    s_lshl_b32 s3, s{sWAVE}, 8
    v_add_u32 v{tB}, s3, v{tB}                 ; tid*4
    ds_read_b32 v{tC}, v{tB} offset:{L_DESC}
    v_readfirstlane_b32 s{sTOT}, v{tA}
    s_sub_u32 s3, s{sTOT}, s{sBATCH}
    s_min_u32 s3, s3, {CAP}
    s_lshl_b32 s3, s3, 2
    v_cmp_gt_u32 vcc, s3, v{tB}
    s_mov_b64 s[{sEX}:{sEX+1}], vcc
    s_mov_b64 exec, vcc
    buffer_load_dwordx3 v[{R0}:{R2}], v{tC}, s[{REC}:{REC+3}], 0 offen
    s_mov_b64 exec, -1
    """)
    helper("HA", KE * NW, min(NP - (4 * NH if P["STAG"] else 0), KE * NW + RA * NH))
    A(f"s_cmp_eq_u64 s[{sEX}:{sEX+1}], 0\ns_cbranch_scc1 K2_C2")
    def rnd(x):
        A(f"v_cvt_pk_bf16_f32 v{x}, v{x}, v{x}\nv_and_b32 v{x}, 0xffff0000, v{x}")
    def rnd2(x, y):
        A(f"v_cvt_pk_bf16_f32 v{y}, v{x}, v{y}\nv_lshlrev_b32 v{x}, 16, v{y}\nv_and_b32 v{y}, 0xffff0000, v{y}")
    A(f"""
    v_lshrrev_b32 v{vGA}, 16, v{R0}
    v_subrev_u32 v{vGA}, s{sNODE0}, v{vGA}
    v_and_b32 v{vOH}, 15, v{vGA}
    v_lshrrev_b32 v{vGA}, 4, v{vGA}
    v_lshlrev_b32 v{vGA}, 2, v{vGA}
    v_mov_b32 v{vRK}, 1
    s_mov_b64 exec, s[{sEX}:{sEX+1}]
    ds_add_rtn_u32 v{vRK}, v{vGA}, v{vRK} offset:{L_CNT}
    s_mov_b64 exec, -1
    v_lshlrev_b32_e64 v{vOH}, v{vOH}, 1
    v_and_b32 v{vSO}, 0xffff, v{R0}
    v_lshlrev_b32 v{rx}, 16, v{R1}
    v_and_b32 v{ry}, 0xffff0000, v{R1}
    v_and_b32 v{rz}, 0xffff0000, v{R2}
    v_mul_f32 v{a0}, v{rx}, v{rx}
    v_mul_f32 v{a1}, v{ry}, v{ry}
    v_mul_f32 v{d}, v{rz}, v{rz}
    """)
    stamp(A, 3)
    rnd2(a0, a1); rnd(d)
    A(f"v_add_f32 v{a0}, v{a0}, v{a1}\nv_add_f32 v{d}, v{a0}, v{d}")
    rnd(d)
    A(f"v_add_f32 v{d}, 0x322bcc77, v{d}")
    rnd(d)
    A(f"v_sqrt_f32 v{d}, v{d}")
    rnd(d)
    A(f"""
    v_rcp_f32 v{ri}, v{d}
    v_mul_f32 v{fc}, 0x40490fdb, v{d}
    v_mul_f32 v{a0}, s{sFREQ}, v{d}
    v_mul_f32 v{a1}, s{sFREQ+1}, v{d}
    v_mul_f32 v{a2}, s{sFREQ+2}, v{d}
    v_mul_f32 v{a3}, s{sFREQ+3}, v{d}
    v_cmp_gt_f32 vcc, 0x40a00000, v{d}
    v_mul_f32 v{d}, 0, v{d}
    """)
    rnd(fc); rnd2(a0, a1); rnd2(a2, a3)
    A(f"v_mul_f32 v{fc}, 0x3e4ccccd, v{fc}")
    rnd(fc)
    for x in (fc, a0, a1, a2, a3):
        A(f"v_mul_f32 v{x}, 0.15915494, v{x}")
    for x in (a0, a1, a2, a3):
        A(f"v_fract_f32 v{x}, v{x}")
    A(f"v_cos_f32 v{fc}, v{fc}")
    for x in (a0, a1, a2, a3):
        A(f"v_sin_f32 v{x}, v{x}")
    rnd(fc); rnd2(a0, a1); rnd2(a2, a3)
    A(f"v_add_f32 v{fc}, 1.0, v{fc}")
    for x in (a0, a1, a2, a3):
        A(f"v_mul_f32 v{x}, v{x}, v{ri}")
    rnd(fc); rnd2(a0, a1); rnd2(a2, a3)
    A(f"v_mul_f32 v{fc}, 0.5, v{fc}\nv_cndmask_b32 v{fc}, v{d}, v{fc}, vcc")
    for x in (rx, ry, rz):
        A(f"v_mul_f32 v{x}, v{x}, v{ri}")
    for x in (a0, a1, a2, a3):
        A(f"v_mul_f32 v{x}, v{x}, v{fc}")
    A(f"""
    v_cvt_pk_bf16_f32 v{vRXY}, v{rx}, v{ry}
    v_cvt_pk_bf16_f32 v{vRZ}, v{rz}, v{rz}
    v_cvt_pk_bf16_f32 v{vP0}, v{a0}, v{a1}
    v_cvt_pk_bf16_f32 v{vP1}, v{a2}, v{a3}
    K2_C2:
    ;@ready v[{R0}:{R2}]
    s_waitcnt lgkmcnt(0)
    s_barrier
    """)
    stamp(A, 4)
    NPH = NP - 4 * NH if P["STAG"] else NP
    helper("HB", KE * NW + RA * NH, NPH)
    if P["STAG"]:
        A(f"""
        s_cmp_eq_u32 s{sFIRST}, 0
        s_cbranch_scc1 K2_HCX
        s_cmp_lt_u32 s{sWAVE}, {H0}
        s_cbranch_scc1 K2_HCX
        s_lshl_b32 s60, s{sWAVE}, 2
        s_add_u32 s60, s60, 4
        """)
        for c in range(4):
            dst_pair()
            if c < 3: A("s_add_u32 s60, s60, 1")
        A("K2_HCX:")
    A(f"""
    v_lshrrev_b32 v{tA}, 3, v{vD1}
    v_lshrrev_b32 v{tB}, 1, v{vD1}
    ds_read_b32 v{tB}, v{tB} offset:{L_CNT}
    v_add_u32 v{tC}, 15, v{tB}
    v_and_b32 v{tC}, -16, v{tC}
    v_mov_b32 v{tD}, v{tC}
    """)
    for m in (1, 2, 4, 8):
        A(f"v_add_u32_dpp v{tD}, v{tD}, v{tD} row_shr:{m} row_mask:0xf bank_mask:0xf")
    A(f"""
    v_sub_u32 v{tD}, v{tD}, v{tC}
    ds_bpermute_b32 v{tC}, v{vGA}, v{tD}
    v_readlane_b32 s{sCNT}, v{tB}, s{sGRP}
    v_readlane_b32 s{sBLK}, v{tD}, s{sGRP}
    v_readlane_b32 s{sCNT12}, v{tB}, 12
    v_readlane_b32 s{sBLK12}, v{tD}, 12
    v_readlane_b32 s18, v{tB}, s{sWAVE}
    v_readlane_b32 s19, v{tD}, s{sWAVE}
    v_add_u32 v{vRK}, v{vRK}, v{tC}
    v_lshrrev_b32 v{tC}, 4, v{vRK}
    v_mul_u32_u24 v{tC}, {BLKB}, v{tC}
    v_and_b32 v{tD}, 15, v{vRK}
    v_lshl_add_u32 v{a0}, v{tD}, 2, v{tC}
    v_lshl_add_u32 v{a1}, v{tD}, 3, v{tC}
    v_lshrrev_b32 v{tD}, 2, v{tD}
    v_lshl_add_u32 v{a2}, v{tD}, 5, v{tC}
    v_and_b32 v{tD}, 3, v{vRK}
    v_lshl_add_u32 v{a2}, v{tD}, 1, v{a2}
    s_mov_b64 exec, s[{sEX}:{sEX+1}]
    ds_write_b32 v{a0}, v{vSO} offset:{L_DESC}
    ds_write_b64 v{a1}, v[{vP0}:{vP1}] offset:{L_DESC+64}
    ds_write_b16 v{a2}, v{vRXY} offset:{L_DESC+192}
    ds_write_b16_d16_hi v{a2}, v{vRXY} offset:{L_DESC+200}
    ds_write_b16 v{a2}, v{vRZ} offset:{L_DESC+208}
    ds_write_b16 v{a2}, v{vOH} offset:{L_DESC+216}
    s_mov_b64 exec, -1
    v_lshrrev_b32 v{tD}, 2, v{tA}
    v_lshlrev_b32 v{a2}, 5, v{tD}
    v_and_b32 v{tD}, 3, v{tA}
    v_lshl_add_u32 v{a2}, v{tD}, 1, v{a2}
    v_mov_b32 v{vSO}, 0xffffff
    v_mov_b32 v{vP0}, 0
    v_mov_b32 v{vP1}, 0
    s_mov_b32 s60, s{sWAVE}
    K2_D0:
    s_and_b32 s3, s18, 15
    s_cbranch_scc0 K2_D1
    s_add_u32 s18, s18, s19
    s_lshr_b32 s18, s18, 4
    s_mul_i32 s18, s18, {BLKB}
    v_lshl_add_u32 v{a0}, v{tA}, 2, s18
    v_add_u32 v{a1}, s18, v{vD1}
    v_add_u32 v{a3}, s18, v{a2}
    v_cmp_le_u32 vcc, s3, v{tA}
    s_mov_b64 exec, vcc
    ds_write_b32 v{a0}, v{vSO} offset:{L_DESC}
    ds_write_b64 v{a1}, v[{vP0}:{vP1}] offset:{L_DESC+64}
    ds_write_b16 v{a3}, v{vP0} offset:{L_DESC+216}
    s_mov_b64 exec, -1
    K2_D1:
    s_mov_b32 s18, s{sCNT12}
    s_mov_b32 s19, s{sBLK12}
    s_add_u32 s60, s60, 1
    s_cmp_eq_u32 s60, {NW}
    s_cbranch_scc1 K2_D0
    """)
    if P["STAG"]:
        A(f"""
        s_cmp_ge_u32 s{sWAVE}, {H0}
        s_cselect_b32 s3, s{sFIRST}, 0
        s_cmp_lg_u32 s3, 0
        s_cbranch_scc1 K2_D2
        s_waitcnt vmcnt(0)
        K2_D2:
        s_mov_b32 s{sFIRST}, 0
        s_waitcnt vmcnt(8) lgkmcnt(0)
        s_barrier
        s_waitcnt vmcnt(0)
        """)
    else:
        A(f"s_mov_b32 s{sFIRST}, 0\ns_waitcnt vmcnt(0) lgkmcnt(0)\ns_barrier")
    stamp(A, 5)
    A(f"""
    K2_G:
    s_add_u32 s{sNHT}, s{sCNT}, 15
    s_lshr_b32 s{sNHT}, s{sNHT}, 4
    s_lshr_b32 s{sBLK}, s{sBLK}, 4
    s_mul_i32 s{sBLK}, s{sBLK}, {BLKB}
    s_add_u32 s{sBLK}, s{sBLK}, {L_DESC}
    """)
    if P["PRIO"]:
        A(f"""
        s_setprio 0
        s_cmp_lt_u32 s{sNHT}, {P['PRIO']}
        s_cbranch_scc1 K2_P0
        s_setprio 1
        s_cmp_eq_u32 s{sNHT}, {P['PRIO']}
        s_cbranch_scc1 K2_P0
        s_setprio 2
        K2_P0:
        """)
    if P.get("FBAL"):
        A(f"s_cmp_eq_u32 s{sGRP}, 12\ns_cselect_b32 s{sNHT}, {P['FBAL']-1}, 3\ns_mul_i32 s{sBLK}, s{sGRP}, {3*BLKB}\ns_add_u32 s{sBLK}, s{sBLK}, {L_DESC}")
    A(f"""
    v_add_u32 v{tA}, s{sBLK}, v{vD0}
    ds_read_b32 v{SON0}, v{tA}
    ds_read_b32 v{SON1}, v{tA} offset:32
    s_cmp_eq_u32 s{sINIT}, 0
    s_cbranch_scc1 K2_MAIN
    """)
    for q in range(8):
        A(f"ds_read_b128 v[{T+4*q}:{T+4*q+3}], v{(vS0, vS1)[q&1]} offset:{2048*(q>>1)}")
    def gather():
        A(f"s_mov_b32 m0, s{sBUF}")
        order = [(c, i) for c in range(4) for i in range(2)] if P["GORD"] == 0 else [(c, i) for i in range(2) for c in range(4)]
        gfl = ["", " nt", " sc1", " sc0"][P["GFL"]]
        for k, (c, i) in enumerate(order):
            r = HT_ if (c == 0 and not P.get("ONEDMA")) else SV
            A(f"buffer_load_dwordx4 v[{SON0+2*i}:{SON0+2*i+1}], s[{r}:{r+3}], 0 idxen offen offset:{128*c}{gfl} lds")
            if k < 7:
                c2, i2 = order[k+1]
                A(f"s_addk_i32 m0, {(c2-c)*1920 + (i2-i)*1024}")
    A(f"""
    s_mov_b32 s{sINIT}, 0
    s_waitcnt lgkmcnt(0)
    s_cmp_eq_u32 s{sNHT}, 0
    s_cbranch_scc1 K2_G1
    """)
    gather()
    A("K2_G1:")
    for q in range(32):
        A(f"v_lshlrev_b32 v{2*q}, 16, v{T+q}\nv_and_b32 v{2*q+1}, 0xffff0000, v{T+q}")
    stamp(A, 7)
    if P.get("STAMP"): A(f"s_mov_b32 s79, s71\ns_add_u32 s78, s78, s{sNHT}")
    A(f"""
    s_cmp_eq_u32 s{sNHT}, 0
    s_cbranch_scc1 K2_NEXT
    s_branch K2_HT
    K2_MAIN:
    s_cmp_eq_u32 s{sNHT}, 0
    s_cbranch_scc1 K2_NEXT
    """)
    gather()
    A("K2_HT:")
    F = T; PHI = T + 16; SA, SB_, SC, SD = T + 28, T + 32, T + 36, T + 40; WR = T + 44
    Q = PHI
    def w2off(ct, o): return L_W2 + 1024 * (ct * 6 + o)
    def ldw(r, ct, o): A(f"ds_read_b128 v[{r}:{r+3}], v{vW} offset:{w2off(ct, o)}")
    def ldwr(ct): A(f"ds_read_b64 v[{WR}:{WR+1}], v{vL8} offset:{L_WR+512*ct}")
    F0, F1, F2, F3 = F, F+4, F+8, F+12
    slots = [F0, F1, SC, SD, SA, SB_]
    A(f"""
    v_add_u32 v{F2}, s{sBLK}, v{vD2}
    v_add_u32 v{F2+1}, s{sBLK}, v{vD1}
    v_add_u32 v{F2+2}, s{sBLK}, v{vD0}
    ds_read_b128 v[{Q}:{Q+3}], v{F2} offset:192
    ds_read_b128 v[{Q+4}:{Q+7}], v{F2} offset:208
    ds_read_b64 v[{PP}:{PP+1}], v{F2+1} offset:64
    ds_read_b32 v{SON0}, v{F2+2} offset:{BLKB}
    ds_read_b32 v{SON1}, v{F2+2} offset:{BLKB+32}
    """)
    ldwr(0)
    for o in range(6): ldw(slots[o], 0, o)
    A(f"s_add_u32 s{sBLK}, s{sBLK}, {BLKB}\ns_sub_u32 s{sNHT}, s{sNHT}, 1")
    Sy, S, Sx, S2, Sz = SOP, SOP+2, SOP+4, SOP+6, SOP+8
    A(f"""
    v_pk_lshlrev_b16 v{Q+6}, v{vSH}, v{Q+6}
    v_pk_lshlrev_b16 v{Q+7}, v{vSH}, v{Q+7}
    v_pk_ashrrev_i16 v{Q+6}, s{sF15}, v{Q+6}
    v_pk_ashrrev_i16 v{Q+7}, s{sF15}, v{Q+7}
    v_and_b32 v{S}, 0x3f803f80, v{Q+6}
    v_and_b32 v{S+1}, 0x3f803f80, v{Q+7}
    v_and_b32 v{S2}, 0x3f803f80, v{Q+6}
    v_and_b32 v{S2+1}, 0x3f803f80, v{Q+7}
    """)
    for c, r in enumerate((Sx, Sy, Sz)):
        A(f"v_and_b32 v{r}, v{Q+6}, v{Q+2*c}\nv_and_b32 v{r+1}, v{Q+7}, v{Q+2*c+1}")
    stamp_acc(A, 11, 15)
    A("s_waitcnt vmcnt(0)")
    stamp_acc(A, 12, 15)
    for q in range(8):
        A(f"ds_read_b128 v[{H+4*q}:{H+4*q+3}], v{(vS0, vS1)[q&1]} offset:{2048*(q>>1)}")
    def mm32(dst, a, b, c):
        A(f"v_mfma_f32_16x16x32_bf16 v[{dst}:{dst+3}], v[{a}:{a+3}], v[{b}:{b+3}], " + ("0" if c is None else f"v[{c}:{c+3}]"))
    def mm16(dst, a, b, c):
        A(f"v_mfma_f32_16x16x16_bf16 v[{dst}:{dst+3}], v[{a}:{a+1}], v[{b}:{b+1}], " + ("0" if c is None else f"v[{c}:{c+3}]"))
    def cvt2(d, x):
        A(f"v_cvt_pk_bf16_f32 v{d}, v{x}, v{x+1}\nv_cvt_pk_bf16_f32 v{d+1}, v{x+2}, v{x+3}")
    PV, PSs, PR = PHI, PHI+4, PHI+8
    def prefetch():
        A(f"s_waitcnt lgkmcnt(0)\ns_cmp_eq_u32 s{sNHT}, 0\ns_cbranch_scc1 K2_NOPF")
        gather()
        A("K2_NOPF:")
        stamp_acc(A, 6, 15)
    if P.get("NOCOMP"): prefetch()
    for ct in range(0 if P.get("NOCOMP") else 4):
        nx = ct < 3
        va = lambda c: V + 8*c + 4*(ct >> 1) + 2*(ct & 1)
        for o in range(6):
            ph = (PSs, PV, PR)[o >> 1]
            mm32(ph, H + 4*(o & 1), slots[o], None if (o & 1) == 0 else ph)
            if o == 1:
                A(f"v_mfma_f32_16x16x4_4b_bf16 v[{F}:{F+15}], v[{PP}:{PP+1}], v[{WR}:{WR+1}], 0")
                if ct == 0 and P["PFPOS"] == 0: prefetch()
                if nx: ldwr(ct + 1)
            if o >= 2 and nx: ldw(slots[o], ct + 1, o)
        if ct == 0 and P["PFPOS"] == 1: prefetch()
        mul4(A, PSs, PSs, F0)
        cvt2(F0, PSs)
        mul4(A, PV, PV, F1)
        mm16(4*ct, F0, S, 4*ct)
        mm16(F1, va(0), ID, None)
        mm16(F3, va(1), ID, None)
        mul4(A, PR, PR, F2)
        mm16(F2, va(2), ID, None)
        cvt2(PHI + 6, PR)
        if nx: ldw(F0, ct + 1, 0)
        mul4(A, F1, F1, PV)
        cvt2(PHI + 4, F1)
        if nx: ldw(F1, ct + 1, 1)
        mul4(A, F3, F3, PV)
        mm32(16 + 4*ct, PHI + 4, S, 16 + 4*ct)
        cvt2(PHI + 8, F3)
        mul4(A, F2, F2, PV)
        mm32(32 + 4*ct, PHI + 6, Sy, 32 + 4*ct)
        cvt2(PHI + 4, F2)
        mm32(48 + 4*ct, PHI + 4, S2, 48 + 4*ct)
    stamp_acc(A, 13, 15)
    A(f"""
    s_cmp_lg_u32 s{sNHT}, 0
    s_cbranch_scc1 K2_HT
    K2_NEXT:
    s_add_u32 s{sBATCH}, s{sBATCH}, {CAP}
    s_cmp_ge_u32 s{sBATCH}, s{sTOT}
    s_cbranch_scc1 K2_EPI
    K2_AGAIN:
    s_barrier
    v_lshrrev_b32 v{tA}, 1, v{vD1}
    v_mov_b32 v{tB}, 0
    ds_write_b32 v{tA}, v{tB} offset:{L_CNT}
    s_cmp_ge_u32 s{sWAVE}, 4
    s_cbranch_scc1 K2_B1
    """)
    offs_load()
    A(f"""
    s_waitcnt vmcnt(0)
    s_branch K2_A2
    K2_EPI:
    s_cmp_gt_u32 s{sGRP}, 12
    s_cbranch_scc1 K2_END
    """)
    stamp(A, 8)
    for q in range(8):
        x = T + 4*q
        for i in range(4): A(f"v_cvt_pk_bf16_f32 v{x+i}, v{8*q+2*i}, v{8*q+2*i+1}")
        A(f"ds_write_b128 v{(vS0, vS1)[q&1]}, v[{x}:{x+3}] offset:{2048*(q>>1)}")
    A(f"v_add_u32 v{H}, s{sBUF}, v{vW}")
    for u in range(8):
        A(f"ds_read_b128 v[{4*u}:{4*u+3}], v{H} offset:{1024*u}")
    row_addr()
    A(f"s_lshl_b32 s3, s{sGRP}, 13")
    for u in range(0 if P.get("NOST") else 8):
        A(f"buffer_store_dwordx4 v[{4*u}:{4*u+3}], v{(vR0, vR1)[u&1]}, s[{OUT}:{OUT+3}], s3 offen offset:{128*(u>>1)}" + ["", " nt", " sc1", " sc0 sc1"][P.get("OST", 0)])
    stamp(A, 9)
    A(f"""
    s_cmp_lg_u32 s{sPASS}, 0
    s_cbranch_scc1 K2_FIN
    s_mov_b32 s{sPASS}, 1
    s_mov_b32 s{sINIT}, 1
    s_cmp_gt_u32 s{sTOT}, {CAP}
    s_cbranch_scc1 K2_MULTI
    v_mov_b32 v{tA}, {L_CNT+68}
    v_mov_b32 v{tB}, 1
    s_mov_b64 exec, 1
    ds_add_rtn_u32 v{tB}, v{tA}, v{tB}
    s_mov_b64 exec, -1
    v_readfirstlane_b32 s3, v{tB}
    s_cmp_lg_u32 s3, 0
    s_cbranch_scc1 K2_FIN
    s_mov_b32 s{sGRP}, 12
    s_mov_b32 s{sCNT}, s{sCNT12}
    s_mov_b32 s{sBLK}, s{sBLK12}
    s_mov_b32 s{sBATCH}, 0
    """)
    set_group()
    A(f"""
    s_branch K2_G
    K2_MULTI:
    s_cmp_eq_u32 s{sWAVE}, 0
    s_cselect_b32 s{sGRP}, 12, 15
    s_mov_b32 s{sBATCH}, 0
    """)
    set_group()
    A("s_branch K2_AGAIN\nK2_FIN:")
    if P.get("STAMP"):
        A("s_waitcnt vmcnt(0)")
        stamp(A, 10)
        stamp_out(A, 8, 1, sWAVE, 40)
    A("K2_END:\ns_endpgm")
    return A, 168, (100 if P.get('STAMP') else 84), L_END

def mul4(A, d, a, b):
    for i in range(4): A(f"v_mul_f32 v{d+i}, v{a+i}, v{b+i}")

def emit(path):
    ks = [(NAME1, k1(), (W + NNW + 1, K1T)), (NAME2, k2(), (B, 64 * NW))]
    out = ["; PaiNN message passing: kernel 1 keeps the edges inside the cutoff and bins them by destination,",
           "; kernel 2 gathers source rows and accumulates the messages per destination node with MFMA.",
           "; Generated by a hand-written generator script."]
    for name, (A, vg, sg, lds), (grid, blk) in ks:
        out.append(f"; @launch kernel={name} grid=({grid},1,1) block=({blk},1,1) lds={lds}")
    out.append('.amdgcn_target "amdgcn-amd-amdhsa--gfx950"\n.text')
    for name, (A, vg, sg, lds), _ in ks:
        body, n = A.finish()
        print(name, "instructions", len(A.ins), "hazard states", n, file=sys.stderr)
        out.append(f".globl {name}\n.p2align 8\n.type {name},@function\n{name}:\n{body}")
    out.append('.section .rodata,"a"')
    for name, (A, vg, sg, lds), _ in ks:
        out.append(f""".p2align 6
.amdhsa_kernel {name}
  .amdhsa_next_free_vgpr {vg}
  .amdhsa_next_free_sgpr {sg}
  .amdhsa_accum_offset {vg}
  .amdhsa_group_segment_fixed_size 0
  .amdhsa_kernarg_size 88
  .amdhsa_user_sgpr_count 2
  .amdhsa_user_sgpr_kernarg_segment_ptr 1
  .amdhsa_system_sgpr_workgroup_id_x 1
  .amdhsa_float_denorm_mode_32 3
.end_amdhsa_kernel""")
    open(path, "w").write("\n".join(out) + "\n")

emit(sys.argv[1])
```

```python
import sys
from asmlib import *

P = dict(NB=196, DSTEARLY=2, PF=0, ORD=0, TPF=1, LATE=1, NOH=0, TEARLY=0, HST=2, OST=2, NHELP=3, HELPA=5, PFPOS=0, GORD=0, GFL=0, STAG=1, PRIO=0, TWO=0, RST=0, CPF=1, REMAP=1, DPRIO=2, TWAIT=0, LFIRST=1, RNDH=0, NINI=2)
for a in sys.argv[2:]:
    k, v = a.split("="); P[k] = int(v)

N = 50000; E = 800000
EC = 4096; W = (E + EC - 1) // EC
NB = P["NB"]; B = (N + NB - 1) // NB; G = (NB + 15) // 16
assert B <= 256 and G <= 13
K1T = 1024
NT = 53; NNW = (N + 16 * NT - 1) // (16 * NT)
WS_W = 0; WS_WBYTES = 26624
WS_H = 0x2000000
WS_OFF = 0x10000
WS_REC = 0x60000
RECB = EC * 12
def magic(d, lim):
    for S in range(16, 32):
        M = -(-(1 << S) // d)
        if M < (1 << 24) and M * lim < (1 << 32) and all((x * M) >> S == x // d for x in range(lim)):
            return M, S
    raise RuntimeError
BM, BS = magic(NB, N)

NAME1 = "painn_bin_kernel"; NAME2 = "painn_msg_kernel"

def srd(A, d, lo, hi, size):
    A(f"s_mov_b32 s{d}, {lo}\ns_mov_b32 s{d+1}, {hi}\ns_mov_b32 s{d+2}, {size}\ns_mov_b32 s{d+3}, 0x20000")
def srd_off(A, d, base, off, size):
    A(f"s_add_u32 s{d}, s{base}, {off}\ns_addc_u32 s{d+1}, s{base+1}, 0\ns_mov_b32 s{d+2}, {size}\ns_mov_b32 s{d+3}, 0x20000")

WS_STAMP = 0x1000000
STV = [0]
def stamp(A, k):
    if not P.get("STAMP"): return
    if STV[0]: A(f"s_memrealtime s[96:97]\ns_waitcnt lgkmcnt(0)\nv_writelane_b32 v{STV[0]}, s96, {k}")
    else: A(f"s_memrealtime s[96:97]\ns_waitcnt lgkmcnt(0)\ns_mov_b32 s{64+k}, s96")
def stamp_acc(A, k, j):
    if not P.get("STAMP"): return
    A(f"s_memrealtime s[96:97]\ns_waitcnt lgkmcnt(0)\ns_sub_u32 s97, s96, s{64+j}\ns_add_u32 s{64+k}, s{64+k}, s97\ns_mov_b32 s{64+j}, s96")
def stamp_out(A, wsreg, region, wave_sgpr, v):
    if not P.get("STAMP"): return
    A(f"s_mov_b64 exec, -1\ns_lshl_b32 s96, s2, 4\ns_add_u32 s96, s96, s{wave_sgpr}\ns_lshl_b32 s96, s96, 6\ns_add_u32 s96, s96, {WS_STAMP + region * 0x80000}")
    srd_off(A, 92, wsreg, "s96", 64)
    if STV[0]: A(f"v_mov_b32 v{v}, v{STV[0]}")
    else:
        for k in range(16): A(f"v_writelane_b32 v{v}, s{64+k}, {k}")
    A(f"v_mbcnt_lo_u32_b32 v{v+1}, -1, 0\nv_mbcnt_hi_u32_b32 v{v+1}, -1, v{v+1}\nv_lshlrev_b32 v{v+1}, 2, v{v+1}")
    A(f"buffer_store_dword v{v}, v{v+1}, s[92:95], 0 offen")
def stamp_init(A):
    if not P.get("STAMP"): return
    if STV[0]: A(f"v_mov_b32 v{STV[0]}, 0")
    else:
        for k in range(16): A(f"s_mov_b32 s{64+k}, 0")
    stamp(A, 0)

def wave_scan(A, x):
    for m in ("row_shr:1 row_mask:0xf", "row_shr:2 row_mask:0xf", "row_shr:4 row_mask:0xf", "row_shr:8 row_mask:0xf",
              "row_bcast:15 row_mask:0xa", "row_bcast:31 row_mask:0xc"):
        A(f"v_add_u32_dpp v{x}, v{x}, v{x} {m} bank_mask:0xf")

PS = 49152
L1_CNT = 3 * PS + 5120; L1_END = L1_CNT + 2048
def k1():
    A = Asm(); STV[0] = 62
    SRC, DST, POS, REC, OFF = 12, 16, 20, 24, 28
    sWAVE, sVAL = 44, 48
    MK = list(range(32, 44, 2)) + list(range(50, 86, 2))
    sA = 50
    A(f"""
    s_cmp_gt_u32 s2, {W+NNW}
    s_cbranch_scc1 K1_END
    s_load_dwordx4 s[4:7], s[0:1], 8
    s_load_dwordx2 s[8:9], s[0:1], 24
    s_load_dwordx2 s[10:11], s[0:1], 80
    v_lshrrev_b32 v1, 6, v0
    v_and_b32 v2, 63, v0
    v_readfirstlane_b32 s{sWAVE}, v1
    v_lshlrev_b32 v3, 4, v2                    ; lane*16
    """)
    stamp_init(A)
    A(f"""
    s_cmp_ge_u32 s2, {W}
    s_cbranch_scc1 K1_NODE
    v_lshlrev_b32 v1, 4, v0
    v_and_b32 v4, 255, v0
    v_lshlrev_b32 v4, 2, v4
    v_add_u32 v4, {L1_CNT}, v4
    v_mov_b32 v5, 0
    ds_write_b32 v4, v5
    s_lshl_b32 s3, s2, 14
    s_sub_u32 s45, {E*4}, s3
    s_min_u32 s45, s45, {EC*4}
    v_cmp_gt_u32 vcc, s45, v1
    s_mov_b64 s[{sVAL}:{sVAL+1}], vcc
    s_waitcnt lgkmcnt(0)
    """)
    srd_off(A, SRC, 6, "s3", "s45")
    srd_off(A, DST, 8, "s3", "s45")
    srd(A, POS, "s4", "s5", N*6)
    if P["TPF"]:
        A(f"""
        s_lshr_b32 s3, s2, 3
        s_min_u32 s3, s3, 23
        s_mul_i32 s3, s3, {98*128}
        v_lshlrev_b32 v46, 6, v0
        v_cmp_gt_u32 vcc, {98*2}, v0
        s_mov_b64 exec, vcc
        buffer_load_dword v45, v46, s[{POS}:{POS+3}], s3 offen
        ;@ready v45
        s_mov_b64 exec, -1
        """)
    A(f"""
    buffer_load_dwordx4 v[4:7], v1, s[{SRC}:{SRC+3}], 0 offen
    buffer_load_dwordx4 v[8:11], v1, s[{DST}:{DST+3}], 0 offen
    """)
    def piece(p):
        A(f"s_lshl_b32 s3, s{sWAVE}, 10\ns_add_u32 m0, s3, {(p%3)*PS}\ns_add_u32 s3, s3, {p*PS}")
        for r in range(3):
            A(f"buffer_load_dwordx4 v3, s[{POS}:{POS+3}], s3 offen lds")
            if r < 2: A(f"s_add_u32 m0, m0, {16*1024}\ns_add_u32 s3, s3, {16*1024}")
    def tail_piece():
        A(f"""
        s_cmp_lt_u32 s{sWAVE}, 5
        s_cselect_b64 exec, -1, 0
        s_lshl_b32 s3, s{sWAVE}, 10
        s_add_u32 m0, s3, {3*PS}
        s_add_u32 s3, s3, {6*PS}
        buffer_load_dwordx4 v3, s[{POS}:{POS+3}], s3 offen lds
        s_mov_b64 exec, -1
        """)
    def lookup(p):
        for j in range(8):
            hi, t1, t2 = [f"s[{MK[3*j+k]}:{MK[3*j+k]+1}]" for k in range(3)]
            if p % 3 == 0:
                A(f"s_or_b64 vcc, {t1}, {t2}")
                A(f"s_nor_b64 exec, vcc, {hi}" if p < 3 else f"s_andn2_b64 exec, {hi}, vcc")
            else:
                t = t1 if p % 3 == 1 else t2
                A(f"s_andn2_b64 exec, {t}, {hi}" if p < 3 else f"s_and_b64 exec, {t}, {hi}")
            A(f"ds_read2_b32 v[{12+2*j}:{13+2*j}], v{28+j} offset1:1")
            A(f";@ready v[{12+2*j}:{13+2*j}]")
        A("s_mov_b64 exec, -1")
    TE = P["TEARLY"]
    if TE and P["TWAIT"]: A("s_waitcnt vmcnt(2)")
    if TE: tail_piece()
    for p in range(TE): piece(p)
    A(f"s_mul_i32 s3, s2, {RECB}\ns_add_u32 s3, s3, {WS_REC}")
    srd_off(A, REC, 10, "s3", RECB)
    A(f"s_lshl_b32 s3, s2, 10\ns_add_u32 s3, s3, {WS_OFF}")
    srd_off(A, OFF, 10, "s3", B*4)
    A(f"s_waitcnt vmcnt({3*TE})\n;@ready v[4:11]")
    stamp(A, 1)
    if TE == 0: tail_piece(); piece(0)
    for j in range(8):
        hi, t1, t2 = MK[3*j:3*j+3]
        A(f"""
        v_mul_u32_u24 v{28+j}, 6, v{4+j}
        v_cmp_lt_u32 vcc, {3*PS//6-1}, v{4+j}
        v_and_b32 v{28+j}, -4, v{28+j}
        v_subrev_u32 v36, {3*PS}, v{28+j}
        s_mov_b64 s[{hi}:{hi+1}], vcc
        v_min_u32 v{28+j}, v{28+j}, v36
        v_cmp_lt_u32 vcc, {2*PS-1}, v{28+j}
        s_mov_b64 s[{t2}:{t2+1}], vcc
        v_cmp_lt_u32 vcc, {PS-1}, v{28+j}
        s_andn2_b64 s[{t1}:{t1+1}], vcc, s[{t2}:{t2+1}]
        """)
    NI = P["NINI"]
    for p in range(max(TE, 1), NI): piece(p)
    for k in range(6):
        A(f"s_waitcnt vmcnt({(3*max(NI, TE)-3, 3, 3, 3, 3, 0)[k]}) lgkmcnt(0)\ns_barrier")
        if k in (0, 1, 2, 5): stamp(A, {0: 2, 1: 8, 2: 9, 5: 4}[k])
        if P["LFIRST"]: lookup(k)
        if k == 0:
            for p in range(max(NI, TE), 3): piece(p)
        if 1 <= k <= 3: piece(k + 2)
        if not P["LFIRST"]: lookup(k)
    A("v_mov_b32 v63, 1")
    for j in range(4):
        s_, d = 4+j, 8+j
        A(f"""
        v_mul_u32_u24 v{56+j}, {BM}, v{d}
        v_lshl_or_b32 v{36+4*j}, v{d}, 16, v{s_}
        v_lshrrev_b32 v{56+j}, {BS-2}, v{56+j}
        v_lshlrev_b32 v{s_}, 4, v{s_}
        v_and_b32 v{56+j}, -4, v{56+j}
        v_lshlrev_b32 v{d}, 4, v{d}
        v_add_u32 v{56+j}, {L1_CNT}, v{56+j}
        """)
    A("s_waitcnt lgkmcnt(0)")
    thr = 0x41c9999a
    for j in range(4):
        s_, d, ps, pd = 4+j, 8+j, 12+2*j, 20+2*j
        r0, r1, r2, rk = 36+4*j, 37+4*j, 38+4*j, 39+4*j
        t = 52
        A(f"""
        v_alignbit_b32 v{ps}, v{ps+1}, v{ps}, v{s_}
        v_alignbit_b32 v{pd}, v{pd+1}, v{pd}, v{d}
        v_lshrrev_b32 v{ps+1}, v{s_}, v{ps+1}
        v_lshrrev_b32 v{pd+1}, v{d}, v{pd+1}
        v_lshlrev_b32 v{t}, 16, v{ps}
        v_lshlrev_b32 v{t+1}, 16, v{pd}
        v_and_b32 v{ps}, 0xffff0000, v{ps}
        v_and_b32 v{pd}, 0xffff0000, v{pd}
        v_lshlrev_b32 v{ps+1}, 16, v{ps+1}
        v_lshlrev_b32 v{pd+1}, 16, v{pd+1}
        v_sub_f32 v{t}, v{t}, v{t+1}
        v_sub_f32 v{t+1}, v{ps}, v{pd}
        v_sub_f32 v{t+2}, v{ps+1}, v{pd+1}
        v_mul_f32 v{t+3}, v{t}, v{t}
        v_fmac_f32 v{t+3}, v{t+1}, v{t+1}
        v_fmac_f32 v{t+3}, v{t+2}, v{t+2}
        v_subrev_u32 v{t+3}, {thr:#x}, v{t+3}
        v_cmp_le_u32 vcc, {0x7f800000-thr:#x}, v{t+3}
        v_cvt_pk_bf16_f32 v{r1}, v{t}, v{t+1}
        v_cvt_pk_bf16_f32 v{r2}, v{t+2}, v{t+2}
        s_and_b64 s[{sA+2*j}:{sA+2*j+1}], vcc, s[{sVAL}:{sVAL+1}]
        s_mov_b64 exec, s[{sA+2*j}:{sA+2*j+1}]
        ds_add_rtn_u32 v{rk}, v{56+j}, v63
        s_mov_b64 exec, -1
        """)
    stamp(A, 5)
    A("s_waitcnt lgkmcnt(0)\ns_barrier")
    A(f"""
    v_add_u32 v1, {L1_CNT}, v3
    ds_read_b128 v[4:7], v1
    v_add_u32 v9, v4, v5
    v_add_u32 v10, v9, v6
    v_add_u32 v11, v10, v7
    v_mov_b32 v12, v11
    """)
    wave_scan(A, 12)
    A(f"""
    v_sub_u32 v12, v12, v11
    v_add_u32 v13, v12, v4
    v_add_u32 v14, v12, v9
    v_add_u32 v15, v12, v10
    ds_write_b128 v1, v[12:15] offset:1024
    """)
    for j in range(4):
        A(f"ds_read_b32 v{16+j}, v{56+j} offset:1024")
    rst = ["", " nt", " sc1", " sc0 sc1"][P["RST"]]
    A(f"""
    s_cmp_lg_u32 s{sWAVE}, 0
    s_cbranch_scc1 K1_NOOFF
    v_lshl_or_b32 v4, v4, 16, v12
    v_lshl_or_b32 v5, v5, 16, v13
    v_lshl_or_b32 v6, v6, 16, v14
    v_lshl_or_b32 v7, v7, 16, v15
    buffer_store_dwordx4 v[4:7], v3, s[{OFF}:{OFF+3}], 0 offen{rst}
    K1_NOOFF:
    """)
    for j in range(4):
        r0 = 36+4*j
        A(f"""
        v_add_u32 v{16+j}, v{16+j}, v{r0+3}
        v_mul_u32_u24 v{16+j}, 12, v{16+j}
        s_mov_b64 exec, s[{sA+2*j}:{sA+2*j+1}]
        buffer_store_dwordx3 v[{r0}:{r0+2}], v{16+j}, s[{REC}:{REC+3}], 0 offen{rst}
        s_mov_b64 exec, -1
        """)
    stamp(A, 6)
    if P.get("STAMP"):
        A("s_waitcnt vmcnt(0)")
        stamp(A, 7)
        stamp_out(A, 10, 0, sWAVE, 4)
    A("s_endpgm")

    SVR, HO, W1 = 12, 16, 20
    LT = 8192
    vR0, vR1, vS0, vS1, vL = 8, 9, 10, 11, 12
    SB = 16; WA = 64; D1 = 96; E1 = 112
    A(f"""
    K1_NODE:
    s_cmp_eq_u32 s2, {W+NNW}
    s_cbranch_scc1 K1_PREP
    s_load_dwordx2 s[90:91], s[0:1], 0
    s_load_dwordx2 s[92:93], s[0:1], 40
    s_sub_u32 s3, s2, {W}
    s_mul_i32 s3, s3, {NT*16}
    s_sub_u32 s45, {N}, s3
    s_min_u32 s45, s45, {NT*16}
    s_lshl_b32 s45, s45, 9
    s_lshl_b32 s3, s3, 9
    v_and_b32 v4, 7, v2
    v_lshrrev_b32 v5, 4, v2
    v_xor_b32 v4, v4, v5
    v_lshlrev_b32 v4, 4, v4
    v_lshrrev_b32 v6, 3, v2
    v_lshl_add_u32 v{vR0}, v6, 9, v4
    v_xor_b32 v{vR1}, 64, v{vR0}
    v_add_u32 v{vR1}, 4096, v{vR1}
    v_lshl_add_u32 v14, v6, 7, v4
    v_xor_b32 v15, 64, v14
    v_bfe_u32 v7, v2, 4, 1
    s_and_b32 s46, s{sWAVE}, 1
    s_lshl_b32 s46, s46, 1
    v_or_b32 v7, s46, v7
    v_lshlrev_b32 v7, 5, v7
    v_xor_b32 v7, v7, v3
    s_waitcnt lgkmcnt(0)
    """)
    srd_off(A, SVR, 90, "s3", "s45")
    A(f"s_lshr_b32 s3, s3, 2\ns_lshr_b32 s45, s45, 2\ns_add_u32 s3, s3, {WS_H}")
    srd_off(A, HO, 10, "s3", "s45")
    srd(A, W1, "s92", "s93", 8192)
    A(f"""
    s_cmp_lt_u32 s{sWAVE}, 8
    s_cselect_b64 exec, -1, 0
    s_lshl_b32 s3, s{sWAVE}, 10
    s_mov_b32 m0, s3
    buffer_load_dwordx4 v7, s[{W1}:{W1+3}], s3 offen lds
    s_mov_b64 exec, -1
    s_lshl_b32 s46, s{sWAVE}, 11
    s_add_u32 s46, s46, {LT}
    s_lshl_b32 s47, s{sWAVE}, 13
    """)
    def tile_dma(k):
        A(f"""
        s_add_u32 m0, s46, {32768*k}
        s_add_u32 s3, s47, {16*8192*k}
        buffer_load_dwordx4 v{vR0}, s[{SVR}:{SVR+3}], s3 offen lds
        s_add_u32 m0, m0, 1024
        buffer_load_dwordx4 v{vR1}, s[{SVR}:{SVR+3}], s3 offen lds
        """)
    tile_dma(0)
    PF = 0
    A(f"""
    v_bfe_u32 v4, v2, 1, 3
    v_xor_b32 v4, v4, v5
    v_and_b32 v6, 15, v2
    v_lshlrev_b32 v6, 7, v6
    v_lshl_add_u32 v4, v4, 4, v6
    v_add_u32 v{vS0}, s46, v4
    v_add_u32 v{vL}, s46, v3
    v_bfe_u32 v57, v2, 2, 2
    v_lshl_add_u32 v58, v5, 3, v57             ; row 8g+r
    v_lshlrev_b32 v58, 7, v58
    v_and_b32 v59, 3, v2
    v_lshl_add_u32 v58, v59, 3, v58
    v_lshrrev_b32 v57, 1, v57
    v_and_b32 v56, 1, v5
    v_lshl_or_b32 v57, v56, 1, v57
    v_lshlrev_b32 v57, 5, v57
    v_xor_b32 v58, v58, v57
    v_xor_b32 v59, 32, v58
    v_xor_b32 v60, 64, v58
    v_xor_b32 v61, 96, v58
    s_waitcnt vmcnt(2)
    s_barrier
    """)
    tile_dma(1)
    for u in range(4):
        for t in range(2):
            for hf in range(2):
                x = WA + 8*u + 4*t + 2*hf
                A(f"ds_read_b64_tr_b16 v[{x}:{x+1}], v{58+u} offset:{4096*t+512*hf}")
    stamp(A, 1)
    A(f"""
    s_mov_b32 s48, s{sWAVE}
    K1_TILE:
    s_cmp_ge_u32 s48, 32
    s_cbranch_scc1 K1_TILE1
    s_lshl_b32 s3, s48, 11
    s_add_u32 m0, s3, {LT + 2*32768}
    s_lshl_b32 s3, s48, 13
    s_add_u32 s3, s3, {32*8192}
    buffer_load_dwordx4 v{vR0}, s[{SVR}:{SVR+3}], s3 offen lds
    s_add_u32 m0, m0, 1024
    buffer_load_dwordx4 v{vR1}, s[{SVR}:{SVR+3}], s3 offen lds
    K1_TILE1:
    v_xor_b32 v{vS1}, 64, v{vS0}
    s_waitcnt vmcnt(4)
    ds_read_b128 v[{SB}:{SB+3}], v{vS0}
    ds_read_b128 v[{SB+4}:{SB+7}], v{vS1}
    """)
    for u in range(4):
        for t in range(2):
            x = WA + 8*u + 4*t
            A(f"v_mfma_f32_16x16x32_bf16 v[{D1+4*u}:{D1+4*u+3}], v[{x}:{x+3}], v[{SB+4*t}:{SB+4*t+3}], " + ("0" if t == 0 else f"v[{D1+4*u}:{D1+4*u+3}]"))
    for u in range(4):
        x = D1 + 4*u; e = E1 + 4*u
        if P["RNDH"]:
            A(f"v_cvt_pk_bf16_f32 v{x+1}, v{x}, v{x+1}\nv_cvt_pk_bf16_f32 v{x+3}, v{x+2}, v{x+3}")
            A(f"v_lshlrev_b32 v{x}, 16, v{x+1}\nv_and_b32 v{x+1}, 0xffff0000, v{x+1}\nv_lshlrev_b32 v{x+2}, 16, v{x+3}\nv_and_b32 v{x+3}, 0xffff0000, v{x+3}")
        for i in range(4): A(f"v_mul_f32 v{e+i}, 0xbfb8aa3b, v{x+i}")
        for i in range(4): A(f"v_exp_f32 v{e+i}, v{e+i}")
        for i in range(4): A(f"v_add_f32 v{e+i}, 1.0, v{e+i}")
        for i in range(4): A(f"v_rcp_f32 v{e+i}, v{e+i}")
        for i in range(4): A(f"v_mul_f32 v{e+i}, v{e+i}, v{x+i}")
        A(f"v_cvt_pk_bf16_f32 v{SB+2*u}, v{e}, v{e+1}\nv_cvt_pk_bf16_f32 v{SB+2*u+1}, v{e+2}, v{e+3}")
    hst = ["", " nt", " sc1", " sc0 sc1"][P["HST"]]
    A(f"""
    ds_write_b128 v{vS0}, v[{SB}:{SB+3}]
    ds_write_b128 v{vS1}, v[{SB+4}:{SB+7}]
    ds_read_b128 v[{SB+8}:{SB+11}], v{vL}
    ds_read_b128 v[{SB+12}:{SB+15}], v{vL} offset:1024
    v_add_u32 v{vS0}, 0x8000, v{vS0}
    v_add_u32 v{vL}, 0x8000, v{vL}
    s_lshl_b32 s47, s48, 11
    buffer_store_dwordx4 v[{SB+8}:{SB+11}], v14, s[{HO}:{HO+3}], s47 offen{hst}
    buffer_store_dwordx4 v[{SB+12}:{SB+15}], v15, s[{HO}:{HO+3}], s47 offen offset:1024{hst}
    s_add_u32 s48, s48, 16
    s_cmp_lt_u32 s48, {NT}
    s_cbranch_scc1 K1_TILE
    """)
    if P["CPF"]:
        A(f"""
        s_cmp_lt_u32 s{sWAVE}, 14
        s_cbranch_scc1 K1_NOCPF
        s_getpc_b64 s[24:25]
        K1_PC:
        s_add_u32 s24, s24, {NAME2}-K1_PC
        s_addc_u32 s25, s25, 0
        s_mov_b32 s26, K2_END-{NAME2}
        s_mov_b32 s27, 0x20000
        v_and_b32 v4, 127, v0
        v_lshlrev_b32 v4, 6, v4
        buffer_load_dword v5, v4, s[24:27], 0 offen
        K1_NOCPF:
        """)
    stamp(A, 6)
    if P.get("STAMP"):
        A("s_waitcnt vmcnt(0)")
        stamp(A, 7)
        stamp_out(A, 10, 0, sWAVE, 4)
    A("s_endpgm")

    A(f"""
    K1_PREP:
    s_load_dwordx4 s[12:15], s[0:1], 48
    v_bfe_u32 v1, v0, 2, 2
    v_and_b32 v4, 3, v0
    v_lshlrev_b32 v4, 1, v4
    v_lshl_add_u32 v1, v1, 4, v4
    v_lshrrev_b32 v6, 4, v2
    s_waitcnt lgkmcnt(0)
    """)
    srd(A, 24, "s12", "s13", 64*192*2)
    srd(A, 28, "s14", "s15", 4*192*2)
    srd_off(A, 32, 10, WS_W, WS_WBYTES)
    A(f"""
    s_mov_b32 s3, s{sWAVE}
    v_mul_u32_u24 v4, {4*384}, v6
    v_add_u32 v4, v4, v1
    v_add_u32 v5, {16*384}, v4
    K1_PW2:
    s_and_b32 s36, s3, 1
    s_lshr_b32 s37, s3, 1
    s_mul_i32 s38, s37, 43
    s_lshr_b32 s38, s38, 7
    s_mul_i32 s39, s38, 3
    s_sub_u32 s39, s37, s39
    s_mul_i32 s36, s36, {32*384}
    s_lshl_b32 s39, s39, 7
    s_add_u32 s36, s36, s39
    s_lshr_b32 s39, s38, 1
    s_lshl_b32 s39, s39, 6
    s_add_u32 s36, s36, s39
    s_and_b32 s39, s38, 1
    s_lshl_b32 s39, s39, 3
    s_add_u32 s36, s36, s39
    """)
    for j in range(8):
        A(f"buffer_load_ushort v{8+j}, v{4+(j>>2)}, s[24:27], s36 offen offset:{384*(j&3)}")
    A(f"""
    s_lshl_b32 s36, s3, 10
    v_lshl_or_b32 v16, v9, 16, v8
    v_lshl_or_b32 v17, v11, 16, v10
    v_lshl_or_b32 v18, v13, 16, v12
    v_lshl_or_b32 v19, v15, 16, v14
    buffer_store_dwordx4 v[16:19], v3, s[32:35], s36 offen
    s_add_u32 s3, s3, 16
    s_cmp_lt_u32 s3, 24
    s_cbranch_scc1 K1_PW2
    s_cmp_ge_u32 s3, 28
    s_cbranch_scc1 K1_END
    s_sub_u32 s3, s3, 24
    s_lshr_b32 s36, s3, 1
    s_lshl_b32 s36, s36, 6
    s_and_b32 s37, s3, 1
    s_lshl_b32 s37, s37, 3
    s_add_u32 s36, s36, s37
    v_min_u32 v6, 2, v6
    v_lshl_add_u32 v4, v6, 7, v1
    """)
    for j in range(4):
        A(f"buffer_load_ushort v{8+j}, v4, s[28:31], s36 offen offset:{384*j}")
    A(f"""
    s_lshl_b32 s36, s3, 9
    s_add_u32 s36, s36, 24576
    v_lshlrev_b32 v3, 3, v2
    v_lshl_or_b32 v8, v9, 16, v8
    v_lshl_or_b32 v9, v11, 16, v10
    buffer_store_dwordx2 v[8:9], v3, s[32:35], s36 offen
    K1_END:
    s_endpgm
    """)
    return A, 128, 100, L1_END

NW = 12
L_W2 = 0; L_WR = 24576
L_DESC = 26624; NBLK = 64; BLKB = 320
L_CNT = L_DESC + NBLK * BLKB
L_BUF = L_CNT + 256
BUFB = 8192
L_END = L_BUF + G * BUFB
CAP = min(NBLK * 16 - G * 15, NW * 64)
assert L_END <= 163840 and G == 13 and L_BUF % 256 == 0

def k2():
    A = Asm(); STV[0] = 0
    SV, DR, OUT, OFF, REC, WW, HT_ = 20, 24, 28, 32, 36, 40, 80
    sWAVE, sBUF, sTOT, sBATCH, sWBASE, sCNT, sBLK, sNHT = 44, 45, 46, 47, 48, 49, 50, 51
    sHI, sF15, sGRP, sPASS, sNODE0, sFIRST = 52, 53, 54, 55, 56, 57
    sEX = 58
    sINIT, sCNT12, sBLK12 = 61, 62, 63
    sFREQ = 14
    vW, vS0, vS1, vSH = 64, 65, 66, 67
    H = 68; V = 76; SOP = 100; PP = 110; ID = 112
    SON0, vDA0, SON1, vDA1, vL8, vD0, vD1, vD2 = 114, 115, 116, 117, 118, 119, 120, 121
    T = 122
    A(f"""
    s_cmp_ge_u32 s2, {B}
    s_cbranch_scc1 K2_END
    """)
    if P["REMAP"]:
        A("s_and_b32 s3, s2, 7\ns_lshl_b32 s3, s3, 5\ns_lshr_b32 s2, s2, 3\ns_or_b32 s2, s2, s3")
    stamp_init(A)
    tA, tB, tC, tD = T, T+1, T+2, T+3
    vO = T + 4
    vR0, vR1 = T + 40, T + 41
    A(f"""
    s_load_dwordx2 s[8:9], s[0:1], 80
    s_load_dwordx2 s[4:5], s[0:1], 0
    s_load_dwordx2 s[6:7], s[0:1], 64
    s_load_dwordx2 s[10:11], s[0:1], 32
    v_lshrrev_b32 v1, 6, v0
    v_and_b32 v2, 63, v0
    v_readfirstlane_b32 s{sWAVE}, v1
    v_lshlrev_b32 v{vW}, 4, v2
    v_mov_b32 v3, 0
    v_lshlrev_b32 v4, 2, v2
    ds_write_b32 v4, v3 offset:{L_CNT}
    s_mul_i32 s{sNODE0}, s2, {NB}
    s_mov_b32 s{sBATCH}, 0
    s_mov_b32 s{sFIRST}, 1
    s_mov_b32 s{sINIT}, 1
    s_mov_b32 s{sPASS}, 0
    s_mov_b32 s{sGRP}, s{sWAVE}
    s_mov_b32 s{sHI}, 0xffff0000
    s_mov_b32 s{sF15}, 0x000f000f
    s_waitcnt lgkmcnt(0)
    s_load_dwordx2 s[12:13], s[10:11], 0
    """)
    srd_off(A, OFF, 8, WS_OFF, W * 1024)
    def offs_load():
        A(f"""
        s_lshl_b32 s3, s{sWAVE}, 16
        s_lshl_b32 s60, s2, 2
        s_add_u32 s3, s3, s60
        v_lshlrev_b32 v{tA}, 6, v{vW}
        buffer_load_dword v{vO}, v{tA}, s[{OFF}:{OFF+3}], s3 offen
        """)
    offs_load()
    A("s_barrier")
    srd_off(A, WW, 8, WS_W, WS_WBYTES)
    for r in range(3):
        if r < 2: A(f"s_add_u32 s3, s{sWAVE}, {r*NW}\ns_lshl_b32 s3, s3, 10\ns_mov_b32 m0, s3")
        else: A(f"s_cmp_lt_u32 s{sWAVE}, 2\ns_cselect_b64 exec, -1, 1\ns_cselect_b32 s60, {NW*1024}, 0\ns_add_u32 s3, s3, s60\ns_mov_b32 m0, s3")
        A(f"buffer_load_dwordx4 v{vW}, s[{WW}:{WW+3}], s3 offen lds")
    A(f"""
    s_mov_b64 exec, -1
    s_add_u32 s60, s{sNODE0}, {NB}
    s_min_u32 s60, s60, {N}
    s_sub_u32 s60, s60, s{sNODE0}
    s_lshl_b32 s60, s60, 9
    s_lshl_b32 s3, s{sNODE0}, 9
    """)
    srd_off(A, DR, 4, "s3", "s60")
    srd_off(A, OUT, 6, "s3", "s60")
    A(f"""
    v_and_b32 v5, 7, v2
    v_lshrrev_b32 v6, 4, v2
    v_xor_b32 v5, v5, v6
    v_lshlrev_b32 v{vDA0}, 4, v5
    v_xor_b32 v{vDA1}, 64, v{vDA0}
    v_lshrrev_b32 v5, 3, v2
    v_lshlrev_b32 v{vD0}, 2, v5
    """)
    def row_addr():
        A(f"""
        v_lshl_add_u32 v{vR0}, v{vD0}, 7, v{vDA0}
        v_lshl_add_u32 v{vR1}, v{vD0}, 7, v{vDA1}
        v_add_u32 v{vR1}, 4096, v{vR1}
        """)
    def dst_pair():
        if P["STAG"]:
            A(f"s_sub_u32 s3, s60, 4\ns_cselect_b32 s3, {4*12}, s3\ns_lshr_b32 s3, s3, 2")
        else: A("s_lshr_b32 s3, s60, 2")
        A(f"""
        s_lshl_b32 s3, s3, 13
        s_and_b32 s18, s60, 3
        s_lshl_b32 s19, s18, 11
        s_add_u32 s19, s19, s3
        s_add_u32 m0, s19, {L_BUF}
        s_lshl_b32 s18, s18, 7
        s_add_u32 s3, s3, s18
        buffer_load_dwordx4 v{vR0}, s[{DR}:{DR+3}], s3 offen lds
        s_add_u32 m0, m0, 1024
        s_nop 0
        buffer_load_dwordx4 v{vR1}, s[{DR}:{DR+3}], s3 offen lds
        """)
    row_addr()
    KE = P["DSTEARLY"]; NP = 4 * G
    for r in range(KE):
        A(f"s_add_u32 s60, s{sWAVE}, {r*NW}")
        dst_pair()
    NH = P["NHELP"]; H0 = NW - NH
    rest = NP - KE * NW
    RA = min(P["HELPA"], (rest + NH - 1) // NH)
    def helper(tag, lo, hi):
        if lo >= hi: return
        A(f"""
        s_cmp_eq_u32 s{sFIRST}, 0
        s_cbranch_scc1 K2_{tag}X
        s_cmp_lt_u32 s{sWAVE}, {H0}
        s_cbranch_scc1 K2_{tag}X
        s_add_u32 s60, s{sWAVE}, {lo - H0}
        K2_{tag}L:
        s_cmp_ge_u32 s60, {hi}
        s_cbranch_scc1 K2_{tag}X
        """)
        dst_pair()
        A(f"s_add_u32 s60, s60, {NH}\ns_branch K2_{tag}L\nK2_{tag}X:")
    srd_off(A, REC, 8, WS_REC, W * RECB)
    srd_off(A, HT_, 8, WS_H, N)
    A(f"s_or_b32 s{HT_+1}, s{HT_+1}, {128 << 16:#x}")
    srd(A, SV, "s4", "s5", N)
    A(f"s_or_b32 s{SV+1}, s{SV+1}, {512 << 16:#x}")
    def set_group():
        A(f"""
        s_min_u32 s{sBUF}, s{sGRP}, {G-1}
        s_lshl_b32 s{sBUF}, s{sBUF}, 13
        s_add_u32 s{sBUF}, s{sBUF}, {L_BUF}
        v_bfe_u32 v{tA}, v{vW}, 5, 3
        v_lshrrev_b32 v{tB}, 8, v{vW}
        v_xor_b32 v{tA}, v{tA}, v{tB}
        v_lshlrev_b32 v{tB}, 4, v{vD1}
        v_lshl_add_u32 v{tA}, v{tA}, 4, v{tB}
        v_add_u32 v{vS0}, s{sBUF}, v{tA}
        v_xor_b32 v{vS1}, 64, v{vS0}
        """)
    A(f"""
    v_and_b32 v5, 15, v2
    v_lshlrev_b32 v{vD1}, 3, v5
    v_sub_u32 v{vSH}, 15, v5
    v_mul_u32_u24 v{vSH}, 0x10001, v{vSH}
    v_lshlrev_b32 v{vD2}, 5, v6
    v_lshlrev_b32 v{vL8}, 3, v2
    v_lshlrev_b32 v6, 2, v6
    v_sub_u32 v5, v5, v6
    v_mov_b32 v7, 0x3f80
    v_mov_b32 v8, 0x3f800000
    v_cmp_eq_u32 vcc, 0, v5
    v_cndmask_b32 v{ID}, 0, v7, vcc
    v_cmp_eq_u32 vcc, 1, v5
    v_cndmask_b32 v{ID}, v{ID}, v8, vcc
    v_cmp_eq_u32 vcc, 2, v5
    v_cndmask_b32 v{ID+1}, 0, v7, vcc
    v_cmp_eq_u32 vcc, 3, v5
    v_cndmask_b32 v{ID+1}, v{ID+1}, v8, vcc
    """)
    set_group()
    A(f"""
    s_waitcnt lgkmcnt(0)
    s_lshl_b32 s{sFREQ}, s12, 16
    s_and_b32 s{sFREQ+1}, s12, s{sHI}
    s_lshl_b32 s{sFREQ+2}, s13, 16
    s_and_b32 s{sFREQ+3}, s13, s{sHI}
    s_cmp_ge_u32 s{sWAVE}, 4
    s_cbranch_scc1 K2_B1
    s_waitcnt vmcnt({3+2*KE})
    K2_A2:
    """)
    stamp(A, 1)
    vC, vSt, vB, vI, vE = T+5, T+6, T+7, T+8, T+9
    A(f"""
    v_lshrrev_b32 v{vC}, 16, v{vO}
    v_and_b32 v{vSt}, 0xffff, v{vO}
    v_mov_b32 v{vB}, v{vC}
    """)
    wave_scan(A, vB)
    A(f"""
    s_cmp_eq_u32 s{sFIRST}, 0
    s_cbranch_scc1 K2_B0
    v_readlane_b32 s3, v{vB}, 63
    v_mov_b32 v{tA}, {L_CNT+64}
    v_mov_b32 v{tB}, s3
    s_mov_b64 exec, 1
    ds_add_rtn_u32 v{tB}, v{tA}, v{tB}
    s_mov_b64 exec, -1
    v_readfirstlane_b32 s{sWBASE}, v{tB}
    K2_B0:
    v_sub_u32 v{vB}, v{vB}, v{vC}
    s_sub_u32 s3, s{sWBASE}, s{sBATCH}
    v_add_u32 v{vB}, s3, v{vB}
    v_sub_u32 v{vI}, 0, v{vB}
    v_max_i32 v{vI}, 0, v{vI}
    v_sub_u32 v{vE}, {CAP}, v{vB}
    v_min_i32 v{vE}, v{vE}, v{vC}
    v_lshrrev_b32 v{tA}, 4, v{vW}
    s_lshl_b32 s3, s{sWAVE}, 6
    v_add_u32 v{tA}, s3, v{tA}
    v_mul_u32_u24 v{tA}, {EC}, v{tA}
    v_add3_u32 v{tA}, v{tA}, v{vSt}, v{vI}
    v_mul_u32_u24 v{tA}, 12, v{tA}
    v_add_u32 v{vB}, v{vB}, v{vI}
    v_lshlrev_b32 v{vB}, 2, v{vB}
    v_sub_u32 v{vE}, v{vE}, v{vI}
    K2_BL:
    v_cmp_lt_i32 vcc, 0, v{vE}
    s_and_b64 exec, exec, vcc
    s_cbranch_execz K2_BX
    ds_write_b32 v{vB}, v{tA} offset:{L_DESC}
    v_add_u32 v{vE}, -1, v{vE}
    v_add_u32 v{vB}, 4, v{vB}
    v_add_u32 v{tA}, 12, v{tA}
    s_branch K2_BL
    K2_BX:
    s_mov_b64 exec, -1
    K2_B1:
    s_waitcnt lgkmcnt(0)
    s_barrier
    """)
    stamp(A, 2)
    R0, R1, R2 = T+4, T+5, T+6
    vSO, vP0, vP1, vRXY, vRZ, vOH, vGA, vRK = T+8, T+10, T+11, T+12, T+13, T+14, T+15, T+16
    d, ri, fc, a0, a1, a2, a3, rx, ry, rz = T+18, T+19, T+20, T+21, T+22, T+23, T+24, T+25, T+26, T+27
    A(f"""
    v_mov_b32 v{tA}, {L_CNT+64}
    ds_read_b32 v{tA}, v{tA}
    v_lshrrev_b32 v{tB}, 2, v{vW}
    s_lshl_b32 s3, s{sWAVE}, 8
    v_add_u32 v{tB}, s3, v{tB}                 ; tid*4
    ds_read_b32 v{tC}, v{tB} offset:{L_DESC}
    v_readfirstlane_b32 s{sTOT}, v{tA}
    s_sub_u32 s3, s{sTOT}, s{sBATCH}
    s_min_u32 s3, s3, {CAP}
    s_lshl_b32 s3, s3, 2
    v_cmp_gt_u32 vcc, s3, v{tB}
    s_mov_b64 s[{sEX}:{sEX+1}], vcc
    s_mov_b64 exec, vcc
    buffer_load_dwordx3 v[{R0}:{R2}], v{tC}, s[{REC}:{REC+3}], 0 offen
    s_mov_b64 exec, -1
    """)
    helper("HA", KE * NW, min(NP - (4 * NH if P["STAG"] else 0), KE * NW + RA * NH))
    A(f"s_cmp_eq_u64 s[{sEX}:{sEX+1}], 0\ns_cbranch_scc1 K2_C2")
    def rnd(x):
        A(f"v_cvt_pk_bf16_f32 v{x}, v{x}, v{x}\nv_and_b32 v{x}, 0xffff0000, v{x}")
    def rnd2(x, y):
        A(f"v_cvt_pk_bf16_f32 v{y}, v{x}, v{y}\nv_lshlrev_b32 v{x}, 16, v{y}\nv_and_b32 v{y}, 0xffff0000, v{y}")
    A(f"""
    v_lshrrev_b32 v{vGA}, 16, v{R0}
    v_subrev_u32 v{vGA}, s{sNODE0}, v{vGA}
    v_and_b32 v{vOH}, 15, v{vGA}
    v_lshrrev_b32 v{vGA}, 4, v{vGA}
    v_lshlrev_b32 v{vGA}, 2, v{vGA}
    v_mov_b32 v{vRK}, 1
    s_mov_b64 exec, s[{sEX}:{sEX+1}]
    ds_add_rtn_u32 v{vRK}, v{vGA}, v{vRK} offset:{L_CNT}
    s_mov_b64 exec, -1
    v_lshlrev_b32_e64 v{vOH}, v{vOH}, 1
    v_and_b32 v{vSO}, 0xffff, v{R0}
    v_lshlrev_b32 v{rx}, 16, v{R1}
    v_and_b32 v{ry}, 0xffff0000, v{R1}
    v_and_b32 v{rz}, 0xffff0000, v{R2}
    v_mul_f32 v{a0}, v{rx}, v{rx}
    v_mul_f32 v{a1}, v{ry}, v{ry}
    v_mul_f32 v{d}, v{rz}, v{rz}
    """)
    stamp(A, 3)
    rnd2(a0, a1); rnd(d)
    A(f"v_add_f32 v{a0}, v{a0}, v{a1}\nv_add_f32 v{d}, v{a0}, v{d}")
    rnd(d)
    A(f"v_add_f32 v{d}, 0x322bcc77, v{d}")
    rnd(d)
    A(f"v_sqrt_f32 v{d}, v{d}")
    rnd(d)
    A(f"""
    v_rcp_f32 v{ri}, v{d}
    v_mul_f32 v{fc}, 0x40490fdb, v{d}
    v_mul_f32 v{a0}, s{sFREQ}, v{d}
    v_mul_f32 v{a1}, s{sFREQ+1}, v{d}
    v_mul_f32 v{a2}, s{sFREQ+2}, v{d}
    v_mul_f32 v{a3}, s{sFREQ+3}, v{d}
    v_cmp_gt_f32 vcc, 0x40a00000, v{d}
    v_mul_f32 v{d}, 0, v{d}
    """)
    rnd(fc); rnd2(a0, a1); rnd2(a2, a3)
    A(f"v_mul_f32 v{fc}, 0x3e4ccccd, v{fc}")
    rnd(fc)
    for x in (fc, a0, a1, a2, a3):
        A(f"v_mul_f32 v{x}, 0.15915494, v{x}")
    for x in (a0, a1, a2, a3):
        A(f"v_fract_f32 v{x}, v{x}")
    A(f"v_cos_f32 v{fc}, v{fc}")
    for x in (a0, a1, a2, a3):
        A(f"v_sin_f32 v{x}, v{x}")
    rnd(fc); rnd2(a0, a1); rnd2(a2, a3)
    A(f"v_add_f32 v{fc}, 1.0, v{fc}")
    for x in (a0, a1, a2, a3):
        A(f"v_mul_f32 v{x}, v{x}, v{ri}")
    rnd(fc); rnd2(a0, a1); rnd2(a2, a3)
    A(f"v_mul_f32 v{fc}, 0.5, v{fc}\nv_cndmask_b32 v{fc}, v{d}, v{fc}, vcc")
    for x in (rx, ry, rz):
        A(f"v_mul_f32 v{x}, v{x}, v{ri}")
    for x in (a0, a1, a2, a3):
        A(f"v_mul_f32 v{x}, v{x}, v{fc}")
    A(f"""
    v_cvt_pk_bf16_f32 v{vRXY}, v{rx}, v{ry}
    v_cvt_pk_bf16_f32 v{vRZ}, v{rz}, v{rz}
    v_cvt_pk_bf16_f32 v{vP0}, v{a0}, v{a1}
    v_cvt_pk_bf16_f32 v{vP1}, v{a2}, v{a3}
    K2_C2:
    ;@ready v[{R0}:{R2}]
    s_waitcnt lgkmcnt(0)
    s_barrier
    """)
    stamp(A, 4)
    NPH = NP - 4 * NH if P["STAG"] else NP
    helper("HB", KE * NW + RA * NH, NPH)
    if P["STAG"]:
        A(f"""
        s_cmp_eq_u32 s{sFIRST}, 0
        s_cbranch_scc1 K2_HCX
        s_cmp_lt_u32 s{sWAVE}, {H0}
        s_cbranch_scc1 K2_HCX
        s_lshl_b32 s60, s{sWAVE}, 2
        s_add_u32 s60, s60, 4
        """)
        for c in range(4):
            dst_pair()
            if c < 3: A("s_add_u32 s60, s60, 1")
        A("K2_HCX:")
    A(f"""
    v_lshrrev_b32 v{tA}, 3, v{vD1}
    v_lshrrev_b32 v{tB}, 1, v{vD1}
    ds_read_b32 v{tB}, v{tB} offset:{L_CNT}
    v_add_u32 v{tC}, 15, v{tB}
    v_and_b32 v{tC}, -16, v{tC}
    v_mov_b32 v{tD}, v{tC}
    """)
    for m in (1, 2, 4, 8):
        A(f"v_add_u32_dpp v{tD}, v{tD}, v{tD} row_shr:{m} row_mask:0xf bank_mask:0xf")
    A(f"""
    v_sub_u32 v{tD}, v{tD}, v{tC}
    ds_bpermute_b32 v{tC}, v{vGA}, v{tD}
    v_readlane_b32 s{sCNT}, v{tB}, s{sGRP}
    v_readlane_b32 s{sBLK}, v{tD}, s{sGRP}
    v_readlane_b32 s{sCNT12}, v{tB}, 12
    v_readlane_b32 s{sBLK12}, v{tD}, 12
    v_readlane_b32 s18, v{tB}, s{sWAVE}
    v_readlane_b32 s19, v{tD}, s{sWAVE}
    v_add_u32 v{vRK}, v{vRK}, v{tC}
    v_lshrrev_b32 v{tC}, 4, v{vRK}
    v_mul_u32_u24 v{tC}, {BLKB}, v{tC}
    v_and_b32 v{tD}, 15, v{vRK}
    v_lshl_add_u32 v{a0}, v{tD}, 2, v{tC}
    v_lshl_add_u32 v{a1}, v{tD}, 3, v{tC}
    v_lshrrev_b32 v{tD}, 2, v{tD}
    v_lshl_add_u32 v{a2}, v{tD}, 5, v{tC}
    v_and_b32 v{tD}, 3, v{vRK}
    v_lshl_add_u32 v{a2}, v{tD}, 1, v{a2}
    s_mov_b64 exec, s[{sEX}:{sEX+1}]
    ds_write_b32 v{a0}, v{vSO} offset:{L_DESC}
    ds_write_b64 v{a1}, v[{vP0}:{vP1}] offset:{L_DESC+64}
    ds_write_b16 v{a2}, v{vRXY} offset:{L_DESC+192}
    ds_write_b16_d16_hi v{a2}, v{vRXY} offset:{L_DESC+200}
    ds_write_b16 v{a2}, v{vRZ} offset:{L_DESC+208}
    ds_write_b16 v{a2}, v{vOH} offset:{L_DESC+216}
    s_mov_b64 exec, -1
    v_lshrrev_b32 v{tD}, 2, v{tA}
    v_lshlrev_b32 v{a2}, 5, v{tD}
    v_and_b32 v{tD}, 3, v{tA}
    v_lshl_add_u32 v{a2}, v{tD}, 1, v{a2}
    v_mov_b32 v{vSO}, 0xffffff
    v_mov_b32 v{vP0}, 0
    v_mov_b32 v{vP1}, 0
    s_mov_b32 s60, s{sWAVE}
    K2_D0:
    s_and_b32 s3, s18, 15
    s_cbranch_scc0 K2_D1
    s_add_u32 s18, s18, s19
    s_lshr_b32 s18, s18, 4
    s_mul_i32 s18, s18, {BLKB}
    v_lshl_add_u32 v{a0}, v{tA}, 2, s18
    v_add_u32 v{a1}, s18, v{vD1}
    v_add_u32 v{a3}, s18, v{a2}
    v_cmp_le_u32 vcc, s3, v{tA}
    s_mov_b64 exec, vcc
    ds_write_b32 v{a0}, v{vSO} offset:{L_DESC}
    ds_write_b64 v{a1}, v[{vP0}:{vP1}] offset:{L_DESC+64}
    ds_write_b16 v{a3}, v{vP0} offset:{L_DESC+216}
    s_mov_b64 exec, -1
    K2_D1:
    s_mov_b32 s18, s{sCNT12}
    s_mov_b32 s19, s{sBLK12}
    s_add_u32 s60, s60, 1
    s_cmp_eq_u32 s60, {NW}
    s_cbranch_scc1 K2_D0
    """)
    if P["STAG"]:
        A(f"""
        s_cmp_ge_u32 s{sWAVE}, {H0}
        s_cselect_b32 s3, s{sFIRST}, 0
        s_cmp_lg_u32 s3, 0
        s_cbranch_scc1 K2_D2
        s_waitcnt vmcnt(0)
        K2_D2:
        s_mov_b32 s{sFIRST}, 0
        s_waitcnt vmcnt(8) lgkmcnt(0)
        s_barrier
        s_waitcnt vmcnt(0)
        """)
    else:
        A(f"s_mov_b32 s{sFIRST}, 0\ns_waitcnt vmcnt(0) lgkmcnt(0)\ns_barrier")
    stamp(A, 5)
    A(f"""
    K2_G:
    s_add_u32 s{sNHT}, s{sCNT}, 15
    s_lshr_b32 s{sNHT}, s{sNHT}, 4
    s_lshr_b32 s{sBLK}, s{sBLK}, 4
    s_mul_i32 s{sBLK}, s{sBLK}, {BLKB}
    s_add_u32 s{sBLK}, s{sBLK}, {L_DESC}
    """)
    if P["PRIO"]:
        A(f"""
        s_setprio 0
        s_cmp_lt_u32 s{sNHT}, {P['PRIO']}
        s_cbranch_scc1 K2_P0
        s_setprio 1
        s_cmp_eq_u32 s{sNHT}, {P['PRIO']}
        s_cbranch_scc1 K2_P0
        s_setprio 2
        K2_P0:
        """)
    if P.get("FBAL"):
        A(f"s_cmp_eq_u32 s{sGRP}, 12\ns_cselect_b32 s{sNHT}, {P['FBAL']-1}, 3\ns_mul_i32 s{sBLK}, s{sGRP}, {3*BLKB}\ns_add_u32 s{sBLK}, s{sBLK}, {L_DESC}")
    A(f"""
    v_add_u32 v{tA}, s{sBLK}, v{vD0}
    ds_read_b32 v{SON0}, v{tA}
    ds_read_b32 v{SON1}, v{tA} offset:32
    s_cmp_eq_u32 s{sINIT}, 0
    s_cbranch_scc1 K2_MAIN
    """)
    for q in range(8):
        A(f"ds_read_b128 v[{T+4*q}:{T+4*q+3}], v{(vS0, vS1)[q&1]} offset:{2048*(q>>1)}")
    def gather():
        A(f"s_mov_b32 m0, s{sBUF}")
        order = [(c, i) for c in range(4) for i in range(2)] if P["GORD"] == 0 else [(c, i) for i in range(2) for c in range(4)]
        gfl = ["", " nt", " sc1", " sc0"][P["GFL"]]
        for k, (c, i) in enumerate(order):
            r = HT_ if (c == 0 and not P.get("ONEDMA")) else SV
            A(f"buffer_load_dwordx4 v[{SON0+2*i}:{SON0+2*i+1}], s[{r}:{r+3}], 0 idxen offen offset:{128*c}{gfl} lds")
            if k < 7:
                c2, i2 = order[k+1]
                A(f"s_addk_i32 m0, {(c2-c)*1920 + (i2-i)*1024}")
    A(f"""
    s_mov_b32 s{sINIT}, 0
    s_waitcnt lgkmcnt(0)
    s_cmp_eq_u32 s{sNHT}, 0
    s_cbranch_scc1 K2_G1
    """)
    gather()
    A("K2_G1:")
    for q in range(32):
        A(f"v_lshlrev_b32 v{2*q}, 16, v{T+q}\nv_and_b32 v{2*q+1}, 0xffff0000, v{T+q}")
    stamp(A, 7)
    if P.get("STAMP"): A(f"s_mov_b32 s79, s71\ns_add_u32 s78, s78, s{sNHT}")
    A(f"""
    s_cmp_eq_u32 s{sNHT}, 0
    s_cbranch_scc1 K2_NEXT
    s_branch K2_HT
    K2_MAIN:
    s_cmp_eq_u32 s{sNHT}, 0
    s_cbranch_scc1 K2_NEXT
    """)
    gather()
    A("K2_HT:")
    if P["DPRIO"]:
        D = P["DPRIO"]
        A(f"""
        s_cmp_ge_u32 s{sNHT}, {D+2}
        s_cbranch_scc1 K2_Q3
        s_cmp_eq_u32 s{sNHT}, {D+1}
        s_cbranch_scc1 K2_Q2
        s_cmp_eq_u32 s{sNHT}, {D}
        s_cbranch_scc1 K2_Q1
        s_setprio 0
        s_branch K2_Q0
        K2_Q3:
        s_setprio 3
        s_branch K2_Q0
        K2_Q2:
        s_setprio 2
        s_branch K2_Q0
        K2_Q1:
        s_setprio 1
        K2_Q0:
        """)
    F = T; PHI = T + 16; SA, SB_, SC, SD = T + 28, T + 32, T + 36, T + 40; WR = T + 44
    Q = PHI
    def w2off(ct, o): return L_W2 + 1024 * (ct * 6 + o)
    def ldw(r, ct, o): A(f"ds_read_b128 v[{r}:{r+3}], v{vW} offset:{w2off(ct, o)}")
    def ldwr(ct): A(f"ds_read_b64 v[{WR}:{WR+1}], v{vL8} offset:{L_WR+512*ct}")
    F0, F1, F2, F3 = F, F+4, F+8, F+12
    slots = [F0, F1, SC, SD, SA, SB_]
    A(f"""
    v_add_u32 v{F2}, s{sBLK}, v{vD2}
    v_add_u32 v{F2+1}, s{sBLK}, v{vD1}
    v_add_u32 v{F2+2}, s{sBLK}, v{vD0}
    ds_read_b128 v[{Q}:{Q+3}], v{F2} offset:192
    ds_read_b128 v[{Q+4}:{Q+7}], v{F2} offset:208
    ds_read_b64 v[{PP}:{PP+1}], v{F2+1} offset:64
    ds_read_b32 v{SON0}, v{F2+2} offset:{BLKB}
    ds_read_b32 v{SON1}, v{F2+2} offset:{BLKB+32}
    """)
    ldwr(0)
    for o in range(6): ldw(slots[o], 0, o)
    A(f"s_add_u32 s{sBLK}, s{sBLK}, {BLKB}\ns_sub_u32 s{sNHT}, s{sNHT}, 1")
    Sy, S, Sx, S2, Sz = SOP, SOP+2, SOP+4, SOP+6, SOP+8
    A(f"""
    v_pk_lshlrev_b16 v{Q+6}, v{vSH}, v{Q+6}
    v_pk_lshlrev_b16 v{Q+7}, v{vSH}, v{Q+7}
    v_pk_ashrrev_i16 v{Q+6}, s{sF15}, v{Q+6}
    v_pk_ashrrev_i16 v{Q+7}, s{sF15}, v{Q+7}
    v_and_b32 v{S}, 0x3f803f80, v{Q+6}
    v_and_b32 v{S+1}, 0x3f803f80, v{Q+7}
    v_and_b32 v{S2}, 0x3f803f80, v{Q+6}
    v_and_b32 v{S2+1}, 0x3f803f80, v{Q+7}
    """)
    for c, r in enumerate((Sx, Sy, Sz)):
        A(f"v_and_b32 v{r}, v{Q+6}, v{Q+2*c}\nv_and_b32 v{r+1}, v{Q+7}, v{Q+2*c+1}")
    stamp_acc(A, 11, 15)
    A("s_waitcnt vmcnt(0)")
    stamp_acc(A, 12, 15)
    for q in range(8):
        A(f"ds_read_b128 v[{H+4*q}:{H+4*q+3}], v{(vS0, vS1)[q&1]} offset:{2048*(q>>1)}")
    def mm32(dst, a, b, c):
        A(f"v_mfma_f32_16x16x32_bf16 v[{dst}:{dst+3}], v[{a}:{a+3}], v[{b}:{b+3}], " + ("0" if c is None else f"v[{c}:{c+3}]"))
    def mm16(dst, a, b, c):
        A(f"v_mfma_f32_16x16x16_bf16 v[{dst}:{dst+3}], v[{a}:{a+1}], v[{b}:{b+1}], " + ("0" if c is None else f"v[{c}:{c+3}]"))
    def cvt2(d, x):
        A(f"v_cvt_pk_bf16_f32 v{d}, v{x}, v{x+1}\nv_cvt_pk_bf16_f32 v{d+1}, v{x+2}, v{x+3}")
    PV, PSs, PR = PHI, PHI+4, PHI+8
    def prefetch():
        A(f"s_waitcnt lgkmcnt(0)\ns_cmp_eq_u32 s{sNHT}, 0\ns_cbranch_scc1 K2_NOPF")
        gather()
        A("K2_NOPF:")
        stamp_acc(A, 6, 15)
    if P.get("NOCOMP"): prefetch()
    for ct in range(0 if P.get("NOCOMP") else 4):
        nx = ct < 3
        va = lambda c: V + 8*c + 4*(ct >> 1) + 2*(ct & 1)
        for o in range(6):
            ph = (PSs, PV, PR)[o >> 1]
            mm32(ph, H + 4*(o & 1), slots[o], None if (o & 1) == 0 else ph)
            if o == 1:
                A(f"v_mfma_f32_16x16x4_4b_bf16 v[{F}:{F+15}], v[{PP}:{PP+1}], v[{WR}:{WR+1}], 0")
                if ct == 0 and P["PFPOS"] == 0: prefetch()
                if nx: ldwr(ct + 1)
            if o >= 2 and nx: ldw(slots[o], ct + 1, o)
        if ct == 0 and P["PFPOS"] == 1: prefetch()
        mul4(A, PSs, PSs, F0)
        cvt2(F0, PSs)
        mul4(A, PV, PV, F1)
        mm16(4*ct, F0, S, 4*ct)
        mm16(F1, va(0), ID, None)
        mm16(F3, va(1), ID, None)
        mul4(A, PR, PR, F2)
        mm16(F2, va(2), ID, None)
        cvt2(PHI + 6, PR)
        if nx: ldw(F0, ct + 1, 0)
        mul4(A, F1, F1, PV)
        cvt2(PHI + 4, F1)
        if nx: ldw(F1, ct + 1, 1)
        mul4(A, F3, F3, PV)
        mm32(16 + 4*ct, PHI + 4, S, 16 + 4*ct)
        cvt2(PHI + 8, F3)
        mul4(A, F2, F2, PV)
        mm32(32 + 4*ct, PHI + 6, Sy, 32 + 4*ct)
        cvt2(PHI + 4, F2)
        mm32(48 + 4*ct, PHI + 4, S2, 48 + 4*ct)
    stamp_acc(A, 13, 15)
    A(f"""
    s_cmp_lg_u32 s{sNHT}, 0
    s_cbranch_scc1 K2_HT
    K2_NEXT:
    s_add_u32 s{sBATCH}, s{sBATCH}, {CAP}
    s_cmp_ge_u32 s{sBATCH}, s{sTOT}
    s_cbranch_scc1 K2_EPI
    K2_AGAIN:
    s_barrier
    v_lshrrev_b32 v{tA}, 1, v{vD1}
    v_mov_b32 v{tB}, 0
    ds_write_b32 v{tA}, v{tB} offset:{L_CNT}
    s_cmp_ge_u32 s{sWAVE}, 4
    s_cbranch_scc1 K2_B1
    """)
    offs_load()
    A(f"""
    s_waitcnt vmcnt(0)
    s_branch K2_A2
    K2_EPI:
    s_cmp_gt_u32 s{sGRP}, 12
    s_cbranch_scc1 K2_END
    """)
    stamp(A, 8)
    for q in range(8):
        x = T + 4*q
        for i in range(4): A(f"v_cvt_pk_bf16_f32 v{x+i}, v{8*q+2*i}, v{8*q+2*i+1}")
        A(f"ds_write_b128 v{(vS0, vS1)[q&1]}, v[{x}:{x+3}] offset:{2048*(q>>1)}")
    A(f"v_add_u32 v{H}, s{sBUF}, v{vW}")
    for u in range(8):
        A(f"ds_read_b128 v[{4*u}:{4*u+3}], v{H} offset:{1024*u}")
    row_addr()
    A(f"s_lshl_b32 s3, s{sGRP}, 13")
    for u in range(0 if P.get("NOST") else 8):
        A(f"buffer_store_dwordx4 v[{4*u}:{4*u+3}], v{(vR0, vR1)[u&1]}, s[{OUT}:{OUT+3}], s3 offen offset:{128*(u>>1)}" + ["", " nt", " sc1", " sc0 sc1"][P.get("OST", 0)])
    stamp(A, 9)
    A(f"""
    s_cmp_lg_u32 s{sPASS}, 0
    s_cbranch_scc1 K2_FIN
    s_mov_b32 s{sPASS}, 1
    s_mov_b32 s{sINIT}, 1
    s_cmp_gt_u32 s{sTOT}, {CAP}
    s_cbranch_scc1 K2_MULTI
    v_mov_b32 v{tA}, {L_CNT+68}
    v_mov_b32 v{tB}, 1
    s_mov_b64 exec, 1
    ds_add_rtn_u32 v{tB}, v{tA}, v{tB}
    s_mov_b64 exec, -1
    v_readfirstlane_b32 s3, v{tB}
    s_cmp_lg_u32 s3, 0
    s_cbranch_scc1 K2_FIN
    s_mov_b32 s{sGRP}, 12
    s_mov_b32 s{sCNT}, s{sCNT12}
    s_mov_b32 s{sBLK}, s{sBLK12}
    s_mov_b32 s{sBATCH}, 0
    """)
    set_group()
    A(f"""
    s_branch K2_G
    K2_MULTI:
    s_cmp_eq_u32 s{sWAVE}, 0
    s_cselect_b32 s{sGRP}, 12, 15
    s_mov_b32 s{sBATCH}, 0
    """)
    set_group()
    A("s_branch K2_AGAIN\nK2_FIN:")
    if P.get("STAMP"):
        A("s_waitcnt vmcnt(0)")
        stamp(A, 10)
        stamp_out(A, 8, 1, sWAVE, 40)
    A("K2_END:\ns_endpgm")
    return A, 168, (100 if P.get('STAMP') else 84), L_END

def mul4(A, d, a, b):
    for i in range(4): A(f"v_mul_f32 v{d+i}, v{a+i}, v{b+i}")

def emit(path):
    ks = [(NAME1, k1(), (W + NNW + 1, K1T)), (NAME2, k2(), (B, 64 * NW))]
    out = ["; PaiNN message passing: kernel 1 keeps the edges inside the cutoff and bins them by destination,",
           "; kernel 2 gathers source rows and accumulates the messages per destination node with MFMA.",
           "; Generated by a hand-written generator script."]
    for name, (A, vg, sg, lds), (grid, blk) in ks:
        out.append(f"; @launch kernel={name} grid=({grid},1,1) block=({blk},1,1) lds={lds}")
    out.append('.amdgcn_target "amdgcn-amd-amdhsa--gfx950"\n.text')
    for name, (A, vg, sg, lds), _ in ks:
        body, n = A.finish()
        print(name, "instructions", len(A.ins), "hazard states", n, file=sys.stderr)
        out.append(f".globl {name}\n.p2align 8\n.type {name},@function\n{name}:\n{body}")
    out.append('.section .rodata,"a"')
    for name, (A, vg, sg, lds), _ in ks:
        out.append(f""".p2align 6
.amdhsa_kernel {name}
  .amdhsa_next_free_vgpr {vg}
  .amdhsa_next_free_sgpr {sg}
  .amdhsa_accum_offset {vg}
  .amdhsa_group_segment_fixed_size 0
  .amdhsa_kernarg_size 88
  .amdhsa_user_sgpr_count 2
  .amdhsa_user_sgpr_kernarg_segment_ptr 1
  .amdhsa_system_sgpr_workgroup_id_x 1
  .amdhsa_float_denorm_mode_32 3
.end_amdhsa_kernel""")
    open(path, "w").write("\n".join(out) + "\n")

emit(sys.argv[1])
```
